```python
import torch

def _softmax(x, axis=-1):
    return torch.softmax(x, dim=axis)
def _gelu(x):
    return torch.nn.functional.gelu(x, approximate="tanh")
def _silu(x):
    return torch.nn.functional.silu(x)
def _sigmoid(x):
    return torch.sigmoid(x)
def _layernorm(x, axis=-1, eps=1e-5):
    m = x.mean(dim=axis, keepdim=True)
    v = x.var(dim=axis, keepdim=True, unbiased=False)
    return (x - m) / torch.sqrt(v + eps)
def _scatter_add(tgt, idx, src, axis=0):
    return tgt.clone().index_add_(axis, idx, src)
def _segment_sum(src, seg, n):
    out = torch.zeros((n,) + src.shape[1:], dtype=src.dtype)
    return out.index_add_(0, seg, src)
def _pad(x, pw):
    flat = tuple(v for pair in reversed(pw) for v in pair)
    return torch.nn.functional.pad(x, flat)

kernel_name = 'parallel_sum__sliding_local_dilated__glu_gated_glu__prompt'

def setup_inputs():

    _w = (lambda a: (lambda t: t.to(torch.bfloat16) if t.is_floating_point() else t)(torch.as_tensor(a)))
    def _A_setup():
        B, S, D = 1, 2048, 1024
        return {
            "x": _w((lambda *s: torch.randn(*s, dtype=torch.bfloat16) * 0.05)(B, S, D)),
            "wqkv": _w((lambda *s: torch.randn(*s, dtype=torch.bfloat16) * 0.05)(D, 3 * D)),
            "wo": _w((lambda *s: torch.randn(*s, dtype=torch.bfloat16) * 0.05)(D, D)),
        }
    _A_in = _A_setup()

    def _B_setup():
        B, S, D, F = 1, 2048, 1024, 3584
        return {
            "x": _w((lambda *s: torch.randn(*s, dtype=torch.bfloat16) * 0.05)(B, S, D)),
            "w_gate": _w((lambda *s: torch.randn(*s, dtype=torch.bfloat16) * 0.05)(D, F)),
            "w_up": _w((lambda *s: torch.randn(*s, dtype=torch.bfloat16) * 0.05)(D, F)),
            "w_down": _w((lambda *s: torch.randn(*s, dtype=torch.bfloat16) * 0.05)(F, D)),
        }
    _B_in = _B_setup()

    return {
        "A_x": _A_in["x"],
        "A_wqkv": _A_in["wqkv"],
        "A_wo": _A_in["wo"],
        "B_x": _B_in["x"],
        "B_w_gate": _B_in["w_gate"],
        "B_w_up": _B_in["w_up"],
        "B_w_down": _B_in["w_down"],
    }

def reference(A_x, A_wqkv, A_wo, B_x, B_w_gate, B_w_up, B_w_down):
    def _A_ref(x, wqkv, wo):
        B, S, D = x.shape
        H = 32; Dh = D // H
        W, dil = 8, 2
        qkv = (lambda x, *d: x.permute(*d))((x @ wqkv).reshape(B, S, 3, H, Dh), 2, 0, 3, 1, 4)
        q, k, v = qkv[0], qkv[1], qkv[2]
        scale = Dh ** -0.5
        pos = torch.arange(S)
        off = torch.arange(W) * dil
        idx = pos[:, None] - off[None, :]
        mask = idx >= 0
        idx_c = torch.where(mask, idx, 0).reshape(-1)
        kg = k[:, :, idx_c, :].reshape(B, H, S, W, Dh)
        vg = v[:, :, idx_c, :].reshape(B, H, S, W, Dh)
        logits = torch.einsum("bhsd,bhswd->bhsw", q, kg) * scale
        logits = torch.where(mask[None, None, :, :], logits, -1e9)
        attn = _softmax(logits, axis=-1)
        o = torch.einsum("bhsw,bhswd->bhsd", attn, vg)
        return (lambda x, *d: x.permute(*d))(o, 0, 2, 1, 3).reshape(B, S, D) @ wo

    def _B_ref(x, w_gate, w_up, w_down):
        g = torch.einsum("bsd,df->bsf", x, w_gate)
        u = torch.einsum("bsd,df->bsf", x, w_up)
        h = _sigmoid(g) * u
        return torch.einsum("bsf,fd->bsd", h, w_down)

    x = A_x
    xn = _layernorm(x, axis=-1)
    return x + _A_ref(xn, A_wqkv, A_wo) + _B_ref(xn, B_w_gate, B_w_up, B_w_down)
```

```python
import re

TRANS = ("v_exp_f32", "v_log_f32", "v_rcp_f32", "v_rsq_f32", "v_sqrt_f32", "v_sin_f32", "v_cos_f32")

def _regs(tok):
    tok = tok.strip()
    tok = tok.lstrip("-")
    m = re.fullmatch(r"abs\((.*)\)", tok)
    if m: tok = m.group(1)
    tok = tok.strip("|")
    m = re.fullmatch(r"([vsa])(\d+)", tok)
    if m: return {(m.group(1), int(m.group(2)))}
    m = re.fullmatch(r"([vsa])\[(\d+):(\d+)\]", tok)
    if m: return {(m.group(1), i) for i in range(int(m.group(2)), int(m.group(3)) + 1)}
    if tok == "vcc": return {("s", 106), ("s", 107)}
    if tok == "vcc_lo": return {("s", 106)}
    if tok == "vcc_hi": return {("s", 107)}
    if tok == "m0": return {("s", 124)}
    if tok == "exec": return {("s", 126), ("s", 127)}
    if tok == "exec_lo": return {("s", 126)}
    if tok == "exec_hi": return {("s", 127)}
    return set()

class Ins:
    __slots__ = ("text", "op", "dst", "src", "kind", "passes", "srcc", "srcab", "nops", "stdata", "dpp", "lds_dma")
    def __init__(self, text):
        self.text = text
        t = text.split(";")[0].strip()
        parts = t.split(None, 1)
        self.op = op = parts[0]
        rest = parts[1] if len(parts) > 1 else ""
        ops = [o.strip() for o in re.split(r",(?![^\[]*\])", rest)] if rest else []
        toks = []
        mods = []
        for i, o in enumerate(ops):
            w = o.split()
            if not w: continue
            toks.append(w[0]); mods += w[1:]
        self.dst = set(); self.src = set(); self.passes = 0; self.srcc = set(); self.srcab = set()
        self.nops = 1; self.stdata = set(); self.dpp = False; self.lds_dma = False
        R = [_regs(x) for x in toks]
        if op == "s_nop":
            self.kind = "nop"; self.nops = int(toks[0], 0) + 1
        elif op.startswith("v_mfma"):
            self.kind = "mfma"
            self.passes = 8 if "32x32x16" in op else 4 if "16x16x32" in op else 16
            self.dst = R[0]; self.srcab = R[1] | R[2]; self.srcc = R[3]; self.src = self.srcab | self.srcc
        elif op.startswith("v_permlane"):
            self.kind = "valu"; self.dst = R[0] | R[1]; self.src = R[0] | R[1]
        elif op.startswith("v_cmp"):
            self.kind = "valu"; self.dst = R[0]; self.src = set().union(*R[1:])
        elif op.startswith("v_readfirstlane") or op.startswith("v_readlane"):
            self.kind = "valu"; self.dst = R[0]; self.src = set().union(*R[1:])
        elif op.startswith("v_"):
            self.kind = "valu"; self.dst = set(R[0]); self.src = set().union(*R[1:]) if len(R) > 1 else set()
            if op.startswith(("v_add_co", "v_sub_co", "v_addc_co", "v_subb_co", "v_mad_u64")):
                self.dst |= R[1]
            if op.startswith(("v_fmac", "v_pk_fmac", "v_dot2c")): self.src |= R[0]
            if op.startswith("v_cndmask") and len(R) == 3: self.src |= _regs("vcc")
            if any(m.startswith(("row_", "quad_perm", "wave_", "row_bcast")) for m in mods) or op.endswith("_dpp"): self.dpp = True
        elif op.startswith("buffer_load") or op.startswith("global_load"):
            self.kind = "vmem"
            if "lds" in mods or "_lds_" in op:
                self.lds_dma = True; self.src = set().union(*R) | _regs("m0")
            else:
                self.dst = R[0]; self.src = set().union(*R[1:])
        elif op.startswith("buffer_store") or op.startswith("buffer_atomic"):
            self.kind = "vmem"; self.src = set().union(*R)
            if "x4" in op or "x3" in op: self.stdata = R[0]
            if op.startswith("buffer_atomic") and "sc0" in mods: self.dst = R[0]
        elif op.startswith("buffer_wbl2") or op.startswith("buffer_inv"):
            self.kind = "vmem"
        elif op.startswith("global_store") or op.startswith("global_atomic"):
            self.kind = "vmem"; self.src = set().union(*R)
            if "x4" in op or "x3" in op: self.stdata = R[1]
        elif op.startswith("ds_read") or op.startswith("ds_bpermute") or op.startswith("ds_swizzle") or op.startswith("ds_permute"):
            self.kind = "ds"; self.dst = R[0]; self.src = set().union(*R[1:])
        elif op.startswith("ds_"):
            self.kind = "ds"; self.src = set().union(*R)
        elif op.startswith("s_"):
            self.kind = "salu"
            if op.startswith(("s_cmp", "s_waitcnt", "s_barrier", "s_branch", "s_cbranch", "s_endpgm", "s_setprio", "s_sleep", "s_bitcmp")):
                self.src = set().union(*R) if R else set()
            else:
                self.dst = R[0] if R else set(); self.src = set().union(*R[1:]) if len(R) > 1 else set()
                if "saveexec" in op: self.dst = self.dst | _regs("exec"); self.src |= _regs("exec")
        else:
            raise ValueError("unknown instruction: " + text)

def need(prev, cur):
    n = 0
    vdst = {r for r in prev.dst if r[0] in "va"}
    sdst = {r for r in prev.dst if r[0] == "s"}
    if prev.kind == "valu":
        if cur.kind == "mfma" and vdst & cur.src: n = max(n, 2)
        if cur.op.startswith("v_permlane") and vdst & cur.src: n = max(n, 2)
        if cur.dpp and vdst & cur.src: n = max(n, 2)
        if cur.op.startswith(("v_readfirstlane", "v_readlane")) and vdst & cur.src: n = max(n, 1)
        if prev.op.startswith(TRANS) and vdst & cur.src and cur.kind != "salu": n = max(n, 1)
        if sdst:
            if cur.kind == "valu" and sdst & cur.src: n = max(n, 4 if cur.op.startswith(("v_readlane", "v_writelane")) else 2)
            if cur.kind == "vmem" and sdst & cur.src: n = max(n, 5)
            if cur.kind == "salu" and sdst & cur.src: n = max(n, 2)
            if cur.kind == "mfma" and (("s", 126) in sdst): n = max(n, 4)
    if prev.kind == "mfma":
        p = prev.passes
        big = {4: 8, 8: 12, 16: 20}[p]
        if cur.kind == "mfma":
            if prev.dst & cur.srcab: n = max(n, big)
            if prev.dst & cur.srcc:
                if not (cur.srcc == prev.dst and cur.passes == p): n = max(n, big - 2)
            if prev.dst & cur.dst and not (cur.srcc == prev.dst and cur.dst == prev.dst and cur.passes == p): n = max(n, big)
        elif cur.kind in ("valu", "vmem", "ds"):
            if prev.dst & (cur.src | cur.dst): n = max(n, big)
            if cur.kind == "valu" and prev.srcc & cur.dst: n = max(n, {4: 3, 8: 7, 16: 15}[p])
    if prev.kind == "salu" and ("s", 124) in sdst and cur.lds_dma: n = max(n, 1)
    if prev.kind == "vmem" and prev.stdata and (prev.stdata & cur.dst): n = max(n, 2)
    return n

class Asm:
    def __init__(self):
        self.items = []
    def __call__(self, text):
        for t in text.split("\n"):
            t = t.strip()
            if t: self.items.append(("i", t))
    def label(self, l): self.items.append(("l", l))
    def raw(self, t): self.items.append(("r", t))
    def comment(self, t): self.items.append(("r", "    ; " + t))

    def finalize(self, window=24):
        out = []
        hist = []
        npad = 0
        def dist_ok(hist, cur):
            req = 0; d = 0
            for p in reversed(hist[-window:]):
                r = need(p, cur) - d
                if r > req: req = r
                d += p.nops
                if d >= 21: break
            return req
        for typ, t in self.items:
            if typ != "i":
                out.append((typ, t, None)); continue
            cur = Ins(t)
            req = dist_ok(hist, cur)
            while req > 0:
                k = min(req, 16)
                nop = Ins(f"s_nop {k-1}")
                out.append(("i", nop.text + "   ; hz", nop)); hist.append(nop); req -= k; npad += 1
            out.append(("i", t, cur)); hist.append(cur)
            if cur.op in ("s_branch", "s_endpgm"): hist = []
        labels = {t: i for i, (typ, t, _) in enumerate(out) if typ == "l"}
        problems = []
        for i, (typ, t, ins) in enumerate(out):
            if typ == "i" and ins.op.startswith(("s_cbranch", "s_branch")):
                tgt = t.split()[1]
                if tgt not in labels: continue
                tail = [x[2] for x in out[max(0, i - 40):i + 1] if x[0] == "i"]
                h = list(tail)
                cnt = 0
                for x in out[labels[tgt]:]:
                    if x[0] != "i": continue
                    r = dist_ok(h, x[2])
                    if r > 0: problems.append(f"hazard across branch '{t}' at '{x[1]}' needs {r}")
                    h.append(x[2]); cnt += x[2].nops
                    if cnt > 21 or x[2].op in ("s_branch", "s_endpgm"): break
        if problems:
            raise RuntimeError("\n".join(problems))
        lines = []
        for typ, t, _ in out:
            if typ == "i": lines.append("    " + t)
            elif typ == "l": lines.append(t + ":")
            else: lines.append(t)
        self.npad = npad
        return "\n".join(lines)
```

```python
import sys, os, math
sys.path.insert(0, os.path.dirname(__file__))
from asmlib import Asm

KN = "parallel_sum__sliding_local_dilated__glu_gated_glu__prompt_kernel"
XN_OFF = 0
ACT_OFF = 0x400000
ACT_BYTES = 64 * 288 * 1024
PART_OFF = 0x2000000
PART_BYTES = 64 * 4 * 4 * 8 * 4096
FLAG_OFF = 0x6000000
LOG2E = 1.4426950408889634

def f2u(x):
    import struct
    return struct.unpack("<I", struct.pack("<f", x))[0]

def srd(a, d, lo, hi, size, off=0):
    if off:
        a(f"s_add_u32 s{d}, s{lo}, {off}")
        a(f"s_addc_u32 s{d+1}, s{hi}, 0")
    else:
        a(f"s_mov_b32 s{d}, s{lo}")
        a(f"s_mov_b32 s{d+1}, s{hi}")
    a(f"s_mov_b32 s{d+2}, {size}")
    a(f"s_mov_b32 s{d+3}, 0x20000")

def header(a, name):
    a.raw(f".globl {name}")
    a.raw(".p2align 8")
    a.raw(f".type {name},@function")
    a.label(name)

def descriptor(name, vgpr, sgpr=102):
    return "\n".join([
        f".amdhsa_kernel {name}",
        f"  .amdhsa_next_free_vgpr {vgpr}",
        f"  .amdhsa_next_free_sgpr {sgpr}",
        f"  .amdhsa_accum_offset {(vgpr + 3) // 4 * 4}",
        "  .amdhsa_group_segment_fixed_size 0",
        "  .amdhsa_kernarg_size 80",
        "  .amdhsa_user_sgpr_count 2",
        "  .amdhsa_user_sgpr_kernarg_segment_ptr 1",
        "  .amdhsa_system_sgpr_workgroup_id_x 1",
        "  .amdhsa_float_denorm_mode_32 3",
        ".end_amdhsa_kernel"])

def xlane_reduce(a, op, v, t):
    a(f"v_mov_b32 v{t}, v{v}")
    a(f"v_permlane16_swap_b32 v{v}, v{t}")
    a(f"{op} v{v}, v{v}, v{t}")
    a(f"v_mov_b32 v{t}, v{v}")
    a(f"v_permlane32_swap_b32 v{v}, v{t}")
    a(f"{op} v{v}, v{v}, v{t}")

def gen_ln(a):
    header(a, "ln_kernel")
    a("s_cmp_ge_u32 s2, 256"); a("s_cbranch_scc1 L_ln_end")
    a("s_load_dwordx2 s[4:5], s[0:1], 0")
    a("s_load_dwordx2 s[6:7], s[0:1], 72")
    a("v_and_b32 v1, 63, v0")
    a("v_lshrrev_b32 v2, 6, v0")
    a("v_and_b32 v3, 7, v1")
    a("v_lshrrev_b32 v4, 3, v1")
    a("v_lshlrev_b32 v5, 11, v3")
    a("v_lshl_add_u32 v5, v4, 4, v5")
    a("v_lshl_add_u32 v5, v2, 9, v5")
    a("s_lshl_b32 s3, s2, 14")
    a("s_waitcnt lgkmcnt(0)")
    srd(a, 8, 4, 5, 2048 * 2048)
    for i in range(4):
        a(f"buffer_load_dwordx4 v[{8+4*i}:{11+4*i}], v5, s[8:11], s3 offen offset:{128*i}")
    srd(a, 12, 6, 7, 2048 * 2048, XN_OFF)
    srd(a, 16, 6, 7, 8192, FLAG_OFF)
    a("s_cmp_lg_u32 s2, 0"); a("s_cbranch_scc1 L_ln_noflag")
    for r in range(60, 64): a(f"v_mov_b32 v{r}, 0")
    a("v_lshlrev_b32 v6, 5, v0")
    a("buffer_store_dwordx4 v[60:63], v6, s[16:19], 0 offen")
    a("buffer_store_dwordx4 v[60:63], v6, s[16:19], 0 offen offset:16")
    a.label("L_ln_noflag")
    a("v_lshlrev_b32 v6, 14, v2")
    a("v_lshl_add_u32 v6, v4, 9, v6")
    a("v_lshl_add_u32 v6, v3, 4, v6")
    a("s_lshr_b32 s20, s2, 2"); a("s_lshl_b32 s20, s20, 16")
    a("s_and_b32 s21, s2, 3"); a("s_lshl_b32 s21, s21, 7")
    a("s_add_u32 s20, s20, s21")
    a("s_add_u32 s21, s20, 4096"); a("s_add_u32 s22, s20, 8192"); a("s_add_u32 s23, s20, 12288")
    a("v_lshlrev_b32 v7, 4, v3")
    a("v_lshl_add_u32 v64, v2, 2, v7")
    a("s_waitcnt vmcnt(0)")
    for i in range(16):
        a(f"v_lshlrev_b32 v{24+2*i}, 16, v{8+i}")
        a(f"v_and_b32 v{25+2*i}, 0xffff0000, v{8+i}")
    def reduce32(src_fn, dst, ldsoff):
        for i in range(16): a(f"v_add_f32 v{8+i}, v{src_fn(2*i)}, v{src_fn(2*i+1)}")
        n = 16
        while n > 1:
            for i in range(n // 2): a(f"v_add_f32 v{8+i}, v{8+i}, v{8+i+n//2}")
            n //= 2
        a(f"v_add_f32_dpp v{dst}, v8, v8 row_ror:8 row_mask:0xf bank_mask:0xf")
        xlane_reduce(a, "v_add_f32", dst, 9)
        a(f"ds_write_b32 v64, v{dst} offset:{ldsoff}")
        a("s_waitcnt lgkmcnt(0)")
        a("s_barrier")
        a(f"ds_read_b128 v[8:11], v7 offset:{ldsoff}")
        a("s_waitcnt lgkmcnt(0)")
        a("v_add_f32 v8, v8, v9"); a("v_add_f32 v10, v10, v11"); a(f"v_add_f32 v{dst}, v8, v10")
        a(f"v_mul_f32 v{dst}, {f2u(1.0/1024)}, v{dst}")
    reduce32(lambda i: 24 + i, 56, 0)
    for i in range(32):
        a(f"v_sub_f32 v{66+i}, v{24+i}, v56")
        a(f"v_mul_f32 v{66+i}, v{66+i}, v{66+i}")
    reduce32(lambda i: 66 + i, 57, 128)
    a("v_cvt_pk_bf16_f32 v58, v56, v57")
    a("v_lshlrev_b32 v56, 16, v58")
    a("v_and_b32 v57, 0xffff0000, v58")
    a(f"v_add_f32 v57, {f2u(1e-5)}, v57")
    a("v_cvt_pk_bf16_f32 v57, v57, v57"); a("v_and_b32 v57, 0xffff0000, v57")
    a("v_sqrt_f32 v57, v57")
    a("v_cvt_pk_bf16_f32 v57, v57, v57"); a("v_and_b32 v57, 0xffff0000, v57")
    a("v_rcp_f32 v58, v57")
    for i in range(16):
        x0, x1 = 24 + 2 * i, 25 + 2 * i
        a(f"v_sub_f32 v{x0}, v{x0}, v56"); a(f"v_sub_f32 v{x1}, v{x1}, v56")
        a(f"v_cvt_pk_bf16_f32 v{66}, v{x0}, v{x1}")
        a(f"v_lshlrev_b32 v{x0}, 16, v66"); a(f"v_and_b32 v{x1}, 0xffff0000, v66")
        for x, t in ((x0, 67), (x1, 69)):
            a(f"v_mul_f32 v{t}, v{x}, v58")
            a(f"v_fma_f32 v{t+1}, -v{t}, v57, v{x}")
            a(f"v_fma_f32 v{t}, v{t+1}, v58, v{t}")
        a(f"v_cvt_pk_bf16_f32 v{8+i}, v67, v69")
    for i in range(4):
        a(f"buffer_store_dwordx4 v[{8+4*i}:{11+4*i}], v6, s[12:15], s{20+i} offen")
    a.label("L_ln_end")
    a("s_endpgm")

XR, HR, QR, GR = 0, 65536, 69632, 94208
UR = GR + 28672 + 128
DUMMY = UR + 28672
G1_LDS = DUMMY + 1024
QKV_K = 18432; PSTR = 9216

def interleave(main, fill):
    out = []; n = len(main); k = len(fill); j = 0
    for i, m in enumerate(main):
        out.append(m)
        tgt = ((i + 1) * k + n - 1) // n if n else k
        while j < min(tgt, k):
            out.append(fill[j]); j += 1
    out += fill[j:]
    return out

def gen_g1(a, cfg):
    NPRE = cfg.get("g1_npre", 2)
    header(a, "g1_kernel")
    WF = [160, 180]; XF = [200, 208]
    HACC, HWF, HXF = 216, 220, 224
    vX, vWq, vWg, vHW, vHX, vDX, vDC, vDD, vDE, vLane = 228, 229, 230, 231, 232, 233, 234, 235, 236, 237
    T0, T1, T2, T3 = 240, 241, 242, 243
    sMT, sNT, sW, sMQ = 12, 13, 14, 15
    SX, SC, SD, SE, SA = 16, 20, 24, 28, 32
    sOX, sOC, sOE, sSC, sSE = 36, 37, 39, 40, 41
    sMX, sMC, sMD, sME = 44, 48, 52, 56
    sCnt = 60
    a("s_cmp_ge_u32 s2, 256"); a("s_cbranch_scc1 L_g1_end")
    a("s_load_dwordx2 s[4:5], s[0:1], 8")
    a("s_load_dwordx4 s[8:11], s[0:1], 32")
    a("s_load_dwordx2 s[6:7], s[0:1], 72")
    a(f"v_and_b32 v{vLane}, 63, v0")
    a(f"v_lshrrev_b32 v{T0}, 6, v0")
    a(f"v_readfirstlane_b32 s{sW}, v{T0}")
    a("s_and_b32 s3, s2, 7"); a("s_lshr_b32 s61, s2, 3")
    a(f"s_and_b32 s{sMT}, s61, 7"); a("s_lshr_b32 s61, s61, 3"); a("s_lshl_b32 s3, s3, 2"); a(f"s_add_u32 s{sNT}, s3, s61")
    a(f"s_and_b32 s{sMQ}, s{sW}, 3")
    def pat12(dst, sidx):
        a(f"s_lshl_b32 s62, s{sidx}, 6")
        a(f"v_add_u32 v{T0}, s62, v{vLane}")
        a(f"v_mul_u32_u24 v{T1}, 5462, v{T0}"); a(f"v_lshrrev_b32 v{T1}, 16, v{T1}")
        a(f"v_mul_u32_u24 v{T2}, 12, v{T1}"); a(f"v_sub_u32 v{T2}, v{T0}, v{T2}")
        a(f"v_mul_u32_u24 v{dst}, 6144, v{T1}")
        a(f"v_lshrrev_b32 v{T3}, 2, v{T2}"); a(f"v_lshl_add_u32 v{dst}, v{T3}, 11, v{dst}")
        a(f"v_and_b32 v{T3}, 3, v{T2}"); a(f"v_lshl_add_u32 v{dst}, v{T3}, 4, v{dst}")
    def ring(base_s, start_s, stride):
        for q in range(4):
            a(f"s_add_u32 s{base_s+q}, s{start_s}, {q*stride}")
    a("s_waitcnt lgkmcnt(0)")
    srd(a, SX, 6, 7, 2048 * 2048, XN_OFF)
    srd(a, SA, 6, 7, ACT_BYTES, ACT_OFF)
    a(f"v_lshlrev_b32 v{vDX}, 4, v{vLane}")
    a(f"s_lshl_b32 s{sOX}, s{sMT}, 3"); a(f"s_add_u32 s{sOX}, s{sOX}, s{sW}"); a(f"s_lshl_b32 s{sOX}, s{sOX}, 16")
    a(f"s_lshl_b32 s63, s{sW}, 11"); a(f"s_add_u32 s63, s63, {XR}")
    ring(sMX, 63, 16384)
    a(f"s_cmp_eq_u32 s{sW}, 7"); a("s_cbranch_scc1 L_g1_w7")
    srd(a, SC, 8, 9, 1024 * 7168); srd(a, SD, 10, 11, 1024 * 7168)
    a(f"s_lshl_b32 s62, s{sW}, 6")
    a(f"v_add_u32 v{T0}, s62, v{vLane}")
    a(f"v_mul_u32_u24 v{T1}, 4682, v{T0}"); a(f"v_lshrrev_b32 v{T1}, 16, v{T1}")
    a(f"v_mul_u32_u24 v{T2}, 14, v{T1}"); a(f"v_sub_u32 v{T2}, v{T0}, v{T2}")
    a(f"v_mul_u32_u24 v{vDC}, 7168, v{T1}"); a(f"v_lshl_add_u32 v{vDC}, v{T2}, 4, v{vDC}")
    a(f"v_mov_b32 v{vDD}, v{vDC}")
    a(f"s_mul_i32 s{sOC}, s{sNT}, 224"); a(f"s_mov_b32 s{sSC}, {32*7168}")
    a(f"s_lshl_b32 s63, s{sW}, 10"); a(f"s_add_u32 s63, s63, {GR}"); ring(sMC, 63, 7168)
    a(f"s_lshl_b32 s63, s{sW}, 10"); a(f"s_add_u32 s63, s63, {UR}"); ring(sMD, 63, 7168)
    a("s_branch L_g1_cd_done")
    a.label("L_g1_w7")
    srd(a, SC, 4, 5, 1024 * 6144); srd(a, SD, 4, 5, 1024 * 6144)
    a("s_mov_b32 s61, 0"); pat12(vDC, 61)
    a("s_mov_b32 s61, 1"); pat12(vDD, 61)
    a(f"s_lshl_b32 s{sOC}, s{sNT}, 6"); a(f"s_mov_b32 s{sSC}, {32*6144}")
    a(f"s_mov_b32 s63, {QR}"); ring(sMC, 63, 6144)
    a(f"s_mov_b32 s63, {QR+1024}"); ring(sMD, 63, 6144)
    a.label("L_g1_cd_done")
    a(f"s_cmp_eq_u32 s{sW}, 3"); a("s_cbranch_scc1 L_g1_e_halo")
    a(f"s_add_u32 s61, s{sW}, 3")
    a(f"s_cmp_eq_u32 s{sW}, 7"); a("s_cselect_b32 s61, 2, s61")
    a("s_cmp_ge_u32 s61, 6"); a("s_cbranch_scc1 L_g1_e_dummy")
    srd(a, SE, 4, 5, 1024 * 6144)
    pat12(vDE, 61)
    a(f"s_lshl_b32 s{sOE}, s{sNT}, 6"); a(f"s_mov_b32 s{sSE}, {32*6144}")
    a(f"s_lshl_b32 s63, s61, 10"); a(f"s_add_u32 s63, s63, {QR}"); ring(sME, 63, 6144)
    a("s_branch L_g1_e_done")
    a.label("L_g1_e_dummy")
    srd(a, SE, 4, 5, 0)
    a(f"v_mov_b32 v{vDE}, 0"); a(f"s_mov_b32 s{sOE}, 0"); a(f"s_mov_b32 s{sSE}, 0")
    a(f"s_mov_b32 s63, {DUMMY}"); ring(sME, 63, 0)
    a("s_branch L_g1_e_done")
    a.label("L_g1_e_halo")
    srd(a, SE, 6, 7, 2048 * 2048, XN_OFF)
    a(f"v_lshrrev_b32 v{T0}, 4, v{vLane}"); a(f"v_lshlrev_b32 v{vDE}, 9, v{T0}")
    a(f"v_and_b32 v{T0}, 15, v{vLane}"); a(f"v_lshl_add_u32 v{vDE}, v{T0}, 4, v{vDE}")
    a(f"v_add_u32 v{vDE}, 256, v{vDE}")
    a(f"s_lshl_b32 s{sOE}, s{sMT}, 19"); a(f"s_sub_u32 s{sOE}, s{sOE}, 65536")
    a(f"s_cmp_eq_u32 s{sMT}, 0"); a(f"s_cselect_b32 s{sOE}, 0x40000000, s{sOE}")
    a(f"s_mov_b32 s{sSE}, 2048")
    a(f"s_mov_b32 s63, {HR}"); ring(sME, 63, 1024)
    a.label("L_g1_e_done")

    def dma(q):
        L = []
        L.append([f"s_mov_b32 m0, s{sMX+q}", f"s_mov_b32 s61, s{sMC+q}",
                  f"buffer_load_dwordx4 v{vDX}, s[{SX}:{SX+3}], s{sOX} offen lds"])
        L.append([f"buffer_load_dwordx4 v{vDX}, s[{SX}:{SX+3}], s{sOX} offen offset:1024 lds",
                  f"s_add_u32 s{sOX}, s{sOX}, 2048"])
        L.append([f"s_mov_b32 m0, s{sMC+q}", f"s_nop 0",
                  f"buffer_load_dwordx4 v{vDC}, s[{SC}:{SC+3}], s{sOC} offen lds"])
        L.append([f"s_mov_b32 m0, s{sMD+q}", f"s_nop 0",
                  f"buffer_load_dwordx4 v{vDD}, s[{SD}:{SD+3}], s{sOC} offen lds",
                  f"s_add_u32 s{sOC}, s{sOC}, s{sSC}"])
        L.append([f"s_mov_b32 m0, s{sME+q}", f"s_nop 0",
                  f"buffer_load_dwordx4 v{vDE}, s[{SE}:{SE+3}], s{sOE} offen lds",
                  f"s_add_u32 s{sOE}, s{sOE}, s{sSE}"])
        return ["\n".join(x) for x in L]
    for q in range(4):
        for x in dma(q): a(x)
    a(f"v_lshlrev_b32 v{vX}, 4, v{vLane}")
    a(f"v_add_u32 v{vHX}, {HR}, v{vX}")
    a(f"s_lshl_b32 s61, s{sMQ}, 12"); a(f"s_add_u32 s61, s61, {XR}")
    a(f"v_add_u32 v{vX}, s61, v{vX}")
    a(f"v_lshrrev_b32 v{T0}, 4, v{vLane}")
    a(f"v_bfe_u32 v{T1}, v{vLane}, 2, 2")
    a(f"v_and_b32 v{T2}, 3, v{vLane}")
    a(f"v_lshrrev_b32 v{T3}, 1, v{T0}"); a(f"v_lshl_add_u32 v{T3}, v{T3}, 3, v{T1}")
    a(f"v_mul_u32_u24 v{vWq}, 192, v{T3}"); a(f"v_mul_u32_u24 v{vWg}, 224, v{T3}")
    a(f"v_lshl_add_u32 v{vWq}, v{T2}, 3, v{vWq}"); a(f"v_lshl_add_u32 v{vWg}, v{T2}, 3, v{vWg}")
    a(f"v_and_b32 v{T3}, 1, v{T0}")
    a(f"v_lshl_add_u32 v{vWq}, v{T3}, 5, v{vWq}"); a(f"v_add_u32 v{vWq}, {QR}, v{vWq}")
    a(f"v_mul_u32_u24 v{T3}, {UR-GR}, v{T3}"); a(f"v_add_u32 v{vWg}, v{vWg}, v{T3}"); a(f"v_add_u32 v{vWg}, {GR}, v{vWg}")
    a(f"v_lshl_add_u32 v{T3}, v{T0}, 3, v{T1}")
    a(f"v_mul_u32_u24 v{vHW}, 192, v{T3}"); a(f"v_lshl_add_u32 v{vHW}, v{T2}, 3, v{vHW}")
    a(f"s_lshl_b32 s61, s{sMQ}, 5"); a(f"s_add_u32 s61, s61, {QR+64}")
    a(f"v_add_u32 v{vHW}, s61, v{vHW}")
    for r in range(160): a(f"v_mov_b32 v{r}, 0")
    for r in range(HACC, HACC + 4): a(f"v_mov_b32 v{r}, 0")

    def reads(nh, slot, kb, st):
        L = []
        for i in range(2):
            L.append(f"ds_read_b128 v[{XF[st]+4*i}:{XF[st]+4*i+3}], v{vX} offset:{slot*16384+i*2048+kb*1024}")
        for t in range(5):
            d = WF[st] + 4 * t
            if nh == 0 and t < 3:
                o = slot * 6144 + kb * 16 * 192 + t * 64; v = vWq; s2 = 4 * 192
            else:
                tp = t - 3 if nh == 0 else t + 2
                o = slot * 7168 + kb * 16 * 224 + tp * 32; v = vWg; s2 = 4 * 224
            L.append(f"ds_read_b64_tr_b16 v[{d}:{d+1}], v{v} offset:{o}")
            L.append(f"ds_read_b64_tr_b16 v[{d+2}:{d+3}], v{v} offset:{o+s2}")
        return L
    def halo_reads(slot):
        return [f"ds_read_b64_tr_b16 v[{HWF}:{HWF+1}], v{vHW} offset:{slot*6144}",
                f"ds_read_b64_tr_b16 v[{HWF+2}:{HWF+3}], v{vHW} offset:{slot*6144+4*192}",
                f"ds_read_b128 v[{HXF}:{HXF+3}], v{vHX} offset:{slot*1024}"]
    def mfmas(st):
        L = []
        for t in range(5):
            for i in range(2):
                c = (t * 2 + i) * 16
                L.append(f"v_mfma_f32_32x32x16_bf16 v[{c}:{c+15}], v[{WF[st]+4*t}:{WF[st]+4*t+3}], v[{XF[st]+4*i}:{XF[st]+4*i+3}], v[{c}:{c+15}]")
        return L
    def phase(nh, q, do_dma, vm, last):
        a("s_waitcnt lgkmcnt(0)")
        fill = reads(nh, q, 1, 1) + (halo_reads(q) if nh == 0 else [])
        for x in interleave(mfmas(0), fill): a(x)
        a("s_waitcnt lgkmcnt(0)")
        m = mfmas(1)
        if nh == 0:
            m.insert(0, f"v_mfma_f32_16x16x32_bf16 v[{HACC}:{HACC+3}], v[{HWF}:{HWF+3}], v[{HXF}:{HXF+3}], v[{HACC}:{HACC+3}]")
        for x in m[:NPRE]: a(x)
        if vm is not None: a(f"s_waitcnt vmcnt({vm})")
        a("s_barrier")
        fill = ([] if last else reads(nh, (q + 1) % 4, 0, 0)) + (dma(q) if do_dma else [])
        for x in interleave(m[NPRE:], fill): a(x)

    a(f"s_cmp_ge_u32 s{sW}, 4"); a("s_cbranch_scc1 L_g1_nh1")
    for nh in range(2):
        if nh == 1: a.label("L_g1_nh1")
        a("s_waitcnt vmcnt(15)"); a("s_barrier")
        for x in reads(nh, 0, 0, 0): a(x)
        a(f"s_mov_b32 s{sCnt}, 0")
        a.label(f"L_g1_loop{nh}")
        for q in range(4): phase(nh, q, True, 10, False)
        a(f"s_add_u32 s{sCnt}, s{sCnt}, 1"); a(f"s_cmp_lt_u32 s{sCnt}, 7"); a(f"s_cbranch_scc1 L_g1_loop{nh}")
        phase(nh, 0, False, 10, False); phase(nh, 1, False, 5, False); phase(nh, 2, False, 0, False); phase(nh, 3, False, None, True)
        g1_epilogue(a, cfg, nh, dict(vLane=vLane, sMT=sMT, sNT=sNT, sMQ=sMQ, SA=SA, HACC=HACC, vL16=vDX))
        if nh == 0: a("s_branch L_g1_end")
    a.label("L_g1_end")
    a("s_endpgm")

def glu_tile(R, P, tmp, store):
    L = []
    for j in range(8): L.append(f"v_mul_f32 v{R+j}, s70, v{R+j}")
    for j in range(8): L.append(f"v_exp_f32 v{R+j}, v{R+j}")
    for j in range(8): L.append(f"v_add_f32 v{R+j}, 1.0, v{R+j}")
    for j in range(8): L.append(f"v_rcp_f32 v{R+j}, v{R+j}")
    for j in range(8): L.append(f"v_mul_f32 v{R+j}, v{R+j}, v{R+8+j}")
    for j in range(4): L.append(f"v_cvt_pk_bf16_f32 v{P+j}, v{R+2*j}, v{R+2*j+1}")
    L.append(f"v_permlane32_swap_b32 v{P}, v{P+2}")
    L.append(f"v_permlane32_swap_b32 v{P+1}, v{P+3}")
    L += store(P)
    return L

def g1_epilogue(a, cfg, nh, r):
    vLane, sMT, sNT, sMQ, SA, HACC, vL16 = r["vLane"], r["sMT"], r["sNT"], r["sMQ"], r["SA"], r["HACC"], r["vL16"]
    a(f"s_lshl_b32 s64, s{sMT}, 3"); a(f"s_lshl_b32 s61, s{sMQ}, 1"); a("s_add_u32 s64, s64, s61"); a(f"s_mul_i32 s64, s64, {288*1024}")
    a(f"s_mul_i32 s65, s{sNT}, 7168"); a(f"s_add_u32 s65, s65, {64*1024}"); a("s_add_u32 s65, s65, s64")
    a(f"s_mov_b32 s70, {f2u(-LOG2E)}")
    def glu(t, i, tp, P):
        def store(P):
            return [f"s_add_u32 s66, s65, {i*288*1024 + tp*1024}",
                    f"buffer_store_dwordx4 v[{P}:{P+3}], v{vL16}, s[{SA}:{SA+3}], s66 offen"]
        return glu_tile((t * 2 + i) * 16, P, None, store)
    T0, T1, T2, T3 = 240, 241, 242, 243
    if nh == 1:
        for j in range(4): a(f"v_mov_b32 v{160+j}, 0")
        a(f"v_lshrrev_b32 v{T0}, 5, v{vLane}"); a(f"v_mul_u32_u24 v{T0}, {PSTR}, v{T0}")
        a(f"v_and_b32 v{T1}, 31, v{vLane}"); a(f"v_lshl_add_u32 v{T0}, v{T1}, 4, v{T0}")
        a(f"ds_write_b128 v{T0}, v[160:163] offset:{QKV_K}")
        a(f"ds_write_b128 v{T0}, v[160:163] offset:{2*QKV_K}")
        k = 0
        for t in range(5):
            for i in range(2):
                for x in glu(t, i, t + 2, 164 + 4 * (k % 8)): a(x)
                k += 1
                if k == 1:
                    a("s_waitcnt lgkmcnt(0)"); a("s_barrier")
        return
    A1, A2, AH = 244, 245, 246
    a(f"v_and_b32 v{T0}, 1, v{vLane}"); a(f"v_mul_u32_u24 v{A1}, {PSTR}, v{T0}")
    a(f"v_bfe_u32 v{T0}, v{vLane}, 1, 4"); a(f"v_lshl_add_u32 v{A1}, v{T0}, 6, v{A1}")
    a(f"v_lshrrev_b32 v{T0}, 5, v{vLane}"); a(f"v_lshl_add_u32 v{A1}, v{T0}, 4, v{A1}")
    a(f"v_bfe_u32 v{T0}, v{vLane}, 3, 1"); a(f"v_lshl_add_u32 v{A1}, v{T0}, 5, v{A1}")
    a(f"s_lshl_b32 s61, s{sMQ}, 11"); a("s_add_u32 s61, s61, 1024")
    a(f"v_add_u32 v{A1}, s61, v{A1}")
    a(f"v_xor_b32 v{A2}, 32, v{A1}")
    k = 0
    for t in range(3):
        for i in range(2):
            R = (t * 2 + i) * 16
            for half, A in ((0, A1), (1, A2)):
                P = 160 + 4 * (k % 8); k += 1
                for j in range(4): a(f"v_cvt_pk_bf16_f32 v{P+j}, v{R+8*half+2*j}, v{R+8*half+2*j+1}")
                a(f"v_permlane32_swap_b32 v{P}, v{P+2}"); a(f"v_permlane32_swap_b32 v{P+1}, v{P+3}")
                a(f"ds_write_b128 v{A}, v[{P}:{P+3}] offset:{t*QKV_K + i*1024}")
    a(f"v_and_b32 v{T0}, 1, v{vLane}"); a(f"v_mul_u32_u24 v{AH}, {PSTR}, v{T0}")
    a(f"v_bfe_u32 v{T0}, v{vLane}, 1, 3"); a(f"v_lshl_add_u32 v{AH}, v{T0}, 6, v{AH}")
    a(f"v_lshrrev_b32 v{T0}, 4, v{vLane}"); a(f"v_lshl_add_u32 v{AH}, v{T0}, 3, v{AH}")
    a(f"v_bfe_u32 v{T0}, v{vLane}, 3, 1"); a(f"v_lshlrev_b32 v{T0}, 5, v{T0}")
    a(f"s_and_b32 s61, s{sMQ}, 1"); a("s_lshl_b32 s61, s61, 5")
    a(f"v_xor_b32 v{T0}, s61, v{T0}"); a(f"v_add_u32 v{AH}, v{AH}, v{T0}")
    a(f"s_lshr_b32 s61, s{sMQ}, 1"); a(f"s_mul_i32 s61, s61, {QKV_K}"); a(f"s_add_u32 s61, s61, {QKV_K + 512}")
    a(f"v_add_u32 v{AH}, s61, v{AH}")
    a(f"v_cvt_pk_bf16_f32 v192, v{HACC}, v{HACC+1}"); a(f"v_cvt_pk_bf16_f32 v193, v{HACC+2}, v{HACC+3}")
    a(f"ds_write_b64 v{AH}, v[192:193]")
    vKQ, vV0, vV1, vO, vNEG = 247, 248, 249, 250, 251
    vI, vG = 252, 253
    a(f"v_and_b32 v{vI}, 15, v{vLane}"); a(f"v_lshrrev_b32 v{vG}, 4, v{vLane}")
    a(f"v_lshlrev_b32 v{vKQ}, 6, v{vI}")
    a(f"v_bfe_u32 v{T0}, v{vLane}, 2, 1"); a(f"v_lshlrev_b32 v{T0}, 5, v{T0}")
    a(f"v_lshlrev_b32 v{T1}, 4, v{vG}"); a(f"v_xor_b32 v{T0}, v{T0}, v{T1}"); a(f"v_add_u32 v{vKQ}, v{vKQ}, v{T0}")
    a(f"s_lshl_b32 s61, s{sMQ}, 11"); a(f"v_add_u32 v{vKQ}, s61, v{vKQ}")
    a(f"v_lshrrev_b32 v{T0}, 2, v{vLane}"); a(f"v_lshlrev_b32 v{vV0}, 6, v{T0}")
    a(f"v_and_b32 v{T0}, 1, v{vG}"); a(f"v_lshl_add_u32 v{vV0}, v{T0}, 5, v{vV0}")
    a(f"v_and_b32 v{T0}, 3, v{vLane}"); a(f"v_lshl_add_u32 v{vV0}, v{T0}, 3, v{vV0}")
    a(f"v_add_u32 v{vV0}, s61, v{vV0}"); a(f"v_xor_b32 v{vV1}, 32, v{vV0}")
    a(f"v_and_b32 v{T0}, 1, v{vG}"); a(f"v_lshlrev_b32 v{vO}, 10, v{T0}")
    a(f"v_lshrrev_b32 v{T0}, 1, v{vG}"); a(f"v_lshl_add_u32 v{vO}, v{T0}, 9, v{vO}")
    a(f"v_lshl_add_u32 v{vO}, v{vI}, 5, v{vO}")
    a(f"v_mov_b32 v{vNEG}, {f2u(-1e30)}")
    MA, MB, MA0 = 72, 80, 88
    a(f"v_add_u32 v{T1}, 9, v{vI}")
    for rr in range(4):
        a(f"v_lshl_add_u32 v{T0}, v{vG}, 2, {rr}")
        a(f"v_cmp_ge_u32 s[{MA+2*rr}:{MA+2*rr+1}], v{T0}, v{T1}")
        a(f"v_sub_u32 v{T2}, v{vI}, v{T0}")
        a(f"v_cmp_ge_u32 s[{MB+2*rr}:{MB+2*rr+1}], 7, v{T2}")
    a(f"s_or_b32 s61, s{sMT}, s{sMQ}"); a("s_cmp_eq_u32 s61, 0"); a("s_cselect_b64 s[62:63], 0, -1")
    for rr in range(4): a(f"s_and_b64 s[{MA0+2*rr}:{MA0+2*rr+1}], s[{MA+2*rr}:{MA+2*rr+1}], s[62:63]")
    a(f"s_mov_b32 s71, {f2u(LOG2E / math.sqrt(32.0))}")
    a(f"s_lshl_b32 s67, s{sNT}, 11"); a("s_add_u32 s67, s67, s64")
    a("s_waitcnt lgkmcnt(0)"); a("s_barrier")
    def unit(bb, par, B):
        KA, KB, Q, V0, V1, SAa, SBb, P, O0, O1, M, T, S = B, B+4, B+8, B+12, B+16, B+20, B+24, B+28, B+32, B+36, B+40, B+41, B+42
        ob = par * PSTR + bb * 1024
        L = [f"ds_read_b128 v[{KA}:{KA+3}], v{vKQ} offset:{QKV_K+ob}",
             f"ds_read_b128 v[{KB}:{KB+3}], v{vKQ} offset:{QKV_K+ob+1024}",
             f"ds_read_b128 v[{Q}:{Q+3}], v{vKQ} offset:{ob+1024}",
             f"ds_read_b64_tr_b16 v[{V0}:{V0+1}], v{vV0} offset:{2*QKV_K+ob}",
             f"ds_read_b64_tr_b16 v[{V0+2}:{V0+3}], v{vV0} offset:{2*QKV_K+ob+1024}",
             f"ds_read_b64_tr_b16 v[{V1}:{V1+1}], v{vV1} offset:{2*QKV_K+ob}",
             f"ds_read_b64_tr_b16 v[{V1+2}:{V1+3}], v{vV1} offset:{2*QKV_K+ob+1024}",
             "WAIT",
             f"v_mfma_f32_16x16x32_bf16 v[{SAa}:{SAa+3}], v[{KA}:{KA+3}], v[{Q}:{Q+3}], 0",
             f"v_mfma_f32_16x16x32_bf16 v[{SBb}:{SBb+3}], v[{KB}:{KB+3}], v[{Q}:{Q+3}], 0"]
        ma = MA0 if bb == 0 else MA
        for rr in range(4): L.append(f"v_cndmask_b32 v{SAa+rr}, v{vNEG}, v{SAa+rr}, s[{ma+2*rr}:{ma+2*rr+1}]")
        for rr in range(4): L.append(f"v_cndmask_b32 v{SBb+rr}, v{vNEG}, v{SBb+rr}, s[{MB+2*rr}:{MB+2*rr+1}]")
        X = [SAa + j for j in range(8)]
        L += [f"v_max3_f32 v{M}, v{X[0]}, v{X[1]}, v{X[2]}", f"v_max3_f32 v{T}, v{X[3]}, v{X[4]}, v{X[5]}",
              f"v_max3_f32 v{M}, v{M}, v{X[6]}, v{X[7]}", f"v_max_f32 v{M}, v{M}, v{T}"]
        L += [f"v_mov_b32 v{T}, v{M}", f"v_permlane16_swap_b32 v{M}, v{T}", f"v_max_f32 v{M}, v{M}, v{T}",
              f"v_mov_b32 v{T}, v{M}", f"v_permlane32_swap_b32 v{M}, v{T}", f"v_max_f32 v{M}, v{M}, v{T}"]
        L.append(f"v_mul_f32 v{M}, s71, v{M}")
        for x in X: L.append(f"v_fma_f32 v{x}, v{x}, s71, -v{M}")
        for x in X: L.append(f"v_exp_f32 v{x}, v{x}")
        L += [f"v_add_f32 v{S}, v{X[0]}, v{X[1]}", f"v_add_f32 v{T}, v{X[2]}, v{X[3]}", f"v_add_f32 v{M}, v{X[4]}, v{X[5]}",
              f"v_add_f32 v{S}, v{S}, v{T}", f"v_add_f32 v{T}, v{X[6]}, v{X[7]}", f"v_add_f32 v{M}, v{M}, v{T}", f"v_add_f32 v{S}, v{S}, v{M}"]
        L += [f"v_mov_b32 v{T}, v{S}", f"v_permlane16_swap_b32 v{S}, v{T}", f"v_add_f32 v{S}, v{S}, v{T}",
              f"v_mov_b32 v{T}, v{S}", f"v_permlane32_swap_b32 v{S}, v{T}", f"v_add_f32 v{S}, v{S}, v{T}"]
        L.append(f"v_rcp_f32 v{S}, v{S}")
        for x in X: L.append(f"v_mul_f32 v{x}, v{x}, v{S}")
        for j in range(4): L.append(f"v_cvt_pk_bf16_f32 v{P+j}, v{X[2*j]}, v{X[2*j+1]}")
        L += [f"v_mfma_f32_16x16x32_bf16 v[{O0}:{O0+3}], v[{V0}:{V0+3}], v[{P}:{P+3}], 0",
              f"v_mfma_f32_16x16x32_bf16 v[{O1}:{O1+3}], v[{V1}:{V1+3}], v[{P}:{P+3}], 0"]
        D = KA
        L += [f"v_cvt_pk_bf16_f32 v{D}, v{O0}, v{O0+1}", f"v_cvt_pk_bf16_f32 v{D+1}, v{O0+2}, v{O0+3}",
              f"v_cvt_pk_bf16_f32 v{D+2}, v{O1}, v{O1+1}", f"v_cvt_pk_bf16_f32 v{D+3}, v{O1+2}, v{O1+3}",
              f"v_permlane16_swap_b32 v{D}, v{D+2}", f"v_permlane16_swap_b32 v{D+1}, v{D+3}",
              f"buffer_store_dwordx4 v[{D}:{D+3}], v{vO}, s[{SA}:{SA+3}], s{68+bb} offen offset:{par*16}"]
        return L
    a("s_mov_b32 s68, s67"); a(f"s_add_u32 s69, s67, {288*1024}")
    for bb in range(2):
        u0 = unit(bb, 0, 0); u1 = unit(bb, 1, 48)
        w = u0.index("WAIT")
        for x in u0[:w] + u1[:w]: a(x)
        a("s_waitcnt lgkmcnt(0)")
        for x, y in zip(u0[w + 1:], u1[w + 1:]):
            a(x); a(y)
    k = 0
    for t in (3, 4):
        for i in range(2):
            for x in glu(t, i, t - 3, 164 + 4 * k): a(x)
            k += 1

G2_NS = 6
G2_WR = G2_NS * 16384
G2_LDS = G2_WR + G2_NS * 8192

def gen_g2(a, cfg):
    NS = G2_NS; NPH = 36
    NPRE = cfg.get("g2_npre", 1)
    header(a, KN)
    WF = [64, 72]; XF = [80, 88]
    vX0, vX1, vW0, vW1, vDX, vDW, vLane = 96, 97, 98, 99, 100, 101, 102
    T0, T1, T2, T3 = 104, 105, 106, 107
    sS, sTM, sTN, sW, sTile = 12, 13, 14, 15, 3
    SX, SW, SP, SF, SXR, SO = 16, 20, 24, 28, 32, 36
    sOX, sOW, sMXb, sMWb, sCnt, sIss = 40, 41, 42, 43, 44, 45
    a("s_cmp_ge_u32 s2, 256"); a("s_cbranch_scc1 L_g2_end")
    a("s_load_dwordx2 s[4:5], s[0:1], 16")
    a("s_load_dwordx4 s[8:11], s[0:1], 48")
    a("s_load_dwordx2 s[6:7], s[0:1], 72")
    a("s_load_dwordx2 s[46:47], s[0:1], 0")
    a(f"v_and_b32 v{vLane}, 63, v0")
    a(f"v_lshrrev_b32 v{T0}, 6, v0")
    a(f"v_readfirstlane_b32 s{sW}, v{T0}")
    a("s_and_b32 s50, s2, 7"); a("s_lshr_b32 s51, s2, 3")
    a(f"s_lshr_b32 s{sS}, s50, 1")
    a("s_and_b32 s50, s50, 1"); a("s_lshl_b32 s50, s50, 2"); a(f"s_and_b32 s{sTM}, s51, 3"); a(f"s_add_u32 s{sTM}, s{sTM}, s50")
    a(f"s_lshr_b32 s{sTN}, s51, 2")
    a(f"s_lshl_b32 s{sTile}, s{sTM}, 3"); a(f"s_add_u32 s{sTile}, s{sTile}, s{sTN}")
    a("s_waitcnt lgkmcnt(0)")
    srd(a, SX, 6, 7, ACT_BYTES, ACT_OFF)
    srd(a, SP, 6, 7, PART_BYTES, PART_OFF)
    srd(a, SF, 6, 7, 8192, FLAG_OFF)
    srd(a, SXR, 46, 47, 2048 * 2048)
    srd(a, SO, 10, 11, 2048 * 2048)
    a(f"s_mov_b32 s50, {3584*2048}")
    a(f"s_cmp_eq_u32 s{sS}, 0")
    a(f"s_cselect_b32 s{SW}, s4, s8"); a(f"s_cselect_b32 s{SW+1}, s5, s9")
    a(f"s_cselect_b32 s{SW+2}, {1024*2048}, s50"); a(f"s_mov_b32 s{SW+3}, 0x20000")
    a(f"s_mul_i32 s50, s{sS}, {1152*2048}"); a(f"s_sub_u32 s50, s50, {1024*2048}")
    a(f"s_cmp_eq_u32 s{sS}, 0"); a("s_cselect_b32 s50, 0, s50")
    a(f"s_lshl_b32 s{sOW}, s{sTN}, 8"); a(f"s_add_u32 s{sOW}, s{sOW}, s50")
    a(f"s_lshl_b32 s50, s{sTM}, 3"); a(f"s_add_u32 s50, s50, s{sW}"); a("s_mul_i32 s50, s50, 288")
    a(f"s_mul_i32 s51, s{sS}, 72"); a("s_add_u32 s50, s50, s51"); a(f"s_lshl_b32 s{sOX}, s50, 10")
    a(f"s_lshl_b32 s{sMXb}, s{sW}, 11")
    a(f"s_lshl_b32 s{sMWb}, s{sW}, 10"); a(f"s_add_u32 s{sMWb}, s{sMWb}, {G2_WR}")
    a(f"v_lshlrev_b32 v{vDX}, 4, v{vLane}")
    a(f"v_lshrrev_b32 v{T0}, 4, v{vLane}")
    a(f"v_bfe_u32 v{T1}, v{vLane}, 2, 2"); a(f"v_xor_b32 v{T1}, v{T1}, v{T0}")
    a(f"v_and_b32 v{T2}, 3, v{vLane}"); a(f"v_lshl_add_u32 v{T1}, v{T1}, 2, v{T2}")
    a(f"v_lshlrev_b32 v{vDW}, 11, v{T0}"); a(f"v_lshl_add_u32 v{vDW}, v{T1}, 4, v{vDW}")
    a(f"s_lshl_b32 s50, s{sW}, 13"); a(f"v_add_u32 v{vDW}, s50, v{vDW}")
    a(f"s_mov_b32 s{sIss}, 0")
    def dma(q, issue_mod):
        L = []
        L.append("\n".join([f"s_add_u32 m0, s{sMXb}, {q*16384}", "s_nop 0",
                  f"buffer_load_dwordx4 v{vDX}, s[{SX}:{SX+3}], s{sOX} offen lds"]))
        L.append("\n".join([f"buffer_load_dwordx4 v{vDX}, s[{SX}:{SX+3}], s{sOX} offen offset:1024 lds",
                  f"s_add_u32 s{sOX}, s{sOX}, 2048"]))
        w = []
        if issue_mod == 32 % NS:
            w += [f"s_add_u32 s{sIss}, s{sIss}, 1",
                  f"s_lshl_b32 s50, s{sS}, 8", f"s_or_b32 s50, s50, s{sIss}", f"s_cmp_eq_u32 s50, {32//NS + 1}",
                  f"s_cselect_b32 s{SW}, s8, s{SW}", f"s_cselect_b32 s{SW+1}, s9, s{SW+1}",
                  f"s_cselect_b32 s{SW+2}, {3584*2048}, s{SW+2}",
                  f"s_cselect_b32 s50, {1024*2048}, 0", f"s_sub_u32 s{sOW}, s{sOW}, s50"]
        w += [f"s_add_u32 m0, s{sMWb}, {q*8192}", "s_nop 0",
              f"buffer_load_dwordx4 v{vDW}, s[{SW}:{SW+3}], s{sOW} offen lds",
              f"s_add_u32 s{sOW}, s{sOW}, 65536"]
        L.append("\n".join(w))
        return L
    for q in range(NS):
        for x in dma(q, q): a(x)
    a(f"s_lshr_b32 s50, s{sW}, 1"); a("s_lshl_b32 s50, s50, 12")
    a(f"v_add_u32 v{vX0}, s50, v{vDX}"); a(f"v_add_u32 v{vX1}, {3*16384}, v{vX0}")
    a(f"v_lshrrev_b32 v{T0}, 4, v{vLane}")
    a(f"v_bfe_u32 v{T1}, v{vLane}, 2, 2")
    a(f"v_and_b32 v{T2}, 3, v{vLane}")
    a(f"v_lshrrev_b32 v{T3}, 1, v{T0}"); a(f"v_lshl_add_u32 v{T3}, v{T3}, 3, v{T1}")
    a(f"v_lshlrev_b32 v{vW0}, 8, v{T3}"); a(f"v_lshl_add_u32 v{vW0}, v{T2}, 3, v{vW0}")
    a(f"v_and_b32 v{T3}, 1, v{T0}"); a(f"v_lshl_add_u32 v{vW0}, v{T3}, 5, v{vW0}")
    a(f"s_and_b32 s50, s{sW}, 1"); a("s_lshl_b32 s50, s50, 1")
    a(f"v_xor_b32 v{T1}, s50, v{T1}")
    a(f"v_lshl_add_u32 v{vW0}, v{T1}, 6, v{vW0}"); a(f"v_add_u32 v{vW0}, {G2_WR}, v{vW0}")
    a(f"v_xor_b32 v{vW1}, 64, v{vW0}")
    for r in range(64): a(f"v_mov_b32 v{r}, 0")
    def reads(slot, kb, st):
        L = []
        vx = vX0 if slot < 3 else vX1
        for i in range(2):
            L.append(f"ds_read_b128 v[{XF[st]+4*i}:{XF[st]+4*i+3}], v{vx} offset:{(slot%3)*16384+i*2048+kb*1024}")
        for t, v in ((0, vW0), (1, vW1)):
            d = WF[st] + 4 * t; o = slot * 8192 + kb * 4096
            L.append(f"ds_read_b64_tr_b16 v[{d}:{d+1}], v{v} offset:{o}")
            L.append(f"ds_read_b64_tr_b16 v[{d+2}:{d+3}], v{v} offset:{o+1024}")
        return L
    def mfmas(st):
        L = []
        for i in range(2):
            for t in range(2):
                c = (i * 2 + t) * 16
                L.append(f"v_mfma_f32_32x32x16_bf16 v[{c}:{c+15}], v[{WF[st]+4*t}:{WF[st]+4*t+3}], v[{XF[st]+4*i}:{XF[st]+4*i+3}], v[{c}:{c+15}]")
        return L
    def phase(q, do_dma, vm, last):
        a("s_waitcnt lgkmcnt(0)")
        for x in interleave(mfmas(0), reads(q, 1, 1)): a(x)
        a("s_waitcnt lgkmcnt(0)")
        m = mfmas(1)
        for x in m[:NPRE]: a(x)
        if vm is not None: a(f"s_waitcnt vmcnt({vm})")
        if not last: a("s_barrier")
        fill = ([] if last else reads((q + 1) % NS, 0, 0)) + (dma(q, q) if do_dma else [])
        for x in interleave(m[NPRE:], fill): a(x)
    a(f"s_waitcnt vmcnt({3*(NS-1)})"); a("s_barrier")
    for x in reads(0, 0, 0): a(x)
    a(f"s_mov_b32 s{sCnt}, 0")
    a.label("L_g2_loop")
    for q in range(NS): phase(q, True, 3 * (NS - 2), False)
    a(f"s_add_u32 s{sCnt}, s{sCnt}, 1"); a(f"s_cmp_lt_u32 s{sCnt}, {NPH//NS - 1}"); a("s_cbranch_scc1 L_g2_loop")
    for q in range(NS):
        rem = NS - 2 - q
        phase(q, False, 3 * rem if rem >= 0 else None, q == NS - 1)
    a(f"s_lshl_b32 s50, s{sTile}, 4"); a(f"s_add_u32 s50, s50, s{sS}"); a("s_lshl_b32 s50, s50, 3"); a(f"s_add_u32 s50, s50, s{sW}"); a("s_lshl_b32 s50, s50, 12")
    for j in range(4):
        a(f"s_cmp_eq_u32 s{sS}, {j}"); a(f"s_cbranch_scc1 L_g2_skip{j}")
        a(f"s_add_u32 s51, s50, {j*4*8*4096}")
        for r4 in range(4):
            a(f"buffer_store_dwordx4 v[{j*16+4*r4}:{j*16+4*r4+3}], v{vDX}, s[{SP}:{SP+3}], s51 offen offset:{r4*1024} sc1")
        a.label(f"L_g2_skip{j}")
    vOut = T3
    a(f"v_and_b32 v{T0}, 31, v{vLane}"); a(f"v_lshlrev_b32 v{T0}, 11, v{T0}")
    a(f"v_lshrrev_b32 v{T1}, 5, v{vLane}")
    a(f"v_lshl_add_u32 v{T2}, v{T1}, 3, v{T0}")
    a(f"v_lshl_add_u32 v{vOut}, v{T1}, 4, v{T0}")
    a(f"s_lshr_b32 s52, s{sW}, 1"); a("s_lshl_b32 s52, s52, 1"); a(f"s_lshr_b32 s53, s{sS}, 1"); a("s_add_u32 s52, s52, s53")
    a(f"s_lshl_b32 s53, s{sTM}, 3"); a("s_add_u32 s52, s52, s53"); a("s_lshl_b32 s52, s52, 16")
    a(f"s_and_b32 s53, s{sW}, 1"); a("s_lshl_b32 s53, s53, 1"); a(f"s_and_b32 s54, s{sS}, 1"); a("s_add_u32 s53, s53, s54")
    a(f"s_lshl_b32 s54, s{sTN}, 2"); a("s_add_u32 s53, s53, s54"); a("s_lshl_b32 s53, s53, 6")
    a("s_add_u32 s52, s52, s53")
    XRr = 64
    a("s_waitcnt vmcnt(0)")
    for q4 in range(4):
        a(f"buffer_load_dwordx2 v[{XRr+2*q4}:{XRr+2*q4+1}], v{T2}, s[{SXR}:{SXR+3}], s52 offen offset:{q4*16}")
    a("s_barrier")
    a(f"s_lshl_b32 s55, s{sTile}, 7")
    a(f"s_cmp_lg_u32 s{sW}, 0"); a("s_cbranch_scc1 L_g2_nopoll")
    a(f"v_mov_b32 v{T0}, 1"); a(f"v_mov_b32 v{T1}, 0")
    a(f"s_lshl_b32 s56, s{sS}, 2"); a("s_add_u32 s56, s56, s55")
    a("s_mov_b64 exec, 1")
    a(f"buffer_store_dword v{T0}, v{T1}, s[{SF}:{SF+3}], s56 offen sc1")
    a("s_mov_b32 s57, 0")
    a.label("L_g2_poll")
    a(f"buffer_load_dwordx4 v[{108}:{111}], v{T1}, s[{SF}:{SF+3}], s55 offen sc1")
    a("s_waitcnt vmcnt(0)")
    a("v_and_b32 v108, v108, v109"); a("v_and_b32 v110, v110, v111"); a("v_and_b32 v108, v108, v110")
    a("v_readfirstlane_b32 s58, v108")
    a("s_add_u32 s57, s57, 1")
    a("s_cmp_ge_u32 s57, 100000"); a("s_cbranch_scc1 L_g2_polldone")
    a("s_cmp_eq_u32 s58, 1"); a("s_cbranch_scc0 L_g2_poll")
    a.label("L_g2_polldone")
    a("s_mov_b64 exec, -1")
    a.label("L_g2_nopoll")
    a("s_barrier")
    a(f"s_lshl_b32 s50, s{sTile}, 2"); a(f"s_add_u32 s50, s50, s{sS}"); a("s_lshl_b32 s50, s50, 5"); a(f"s_add_u32 s50, s50, s{sW}"); a("s_lshl_b32 s50, s50, 12")
    for s in range(4):
        a(f"s_cmp_lg_u32 s{sS}, {s}"); a(f"s_cbranch_scc1 L_g2_fin{s}_skip")
        R = s * 16
        others = [x for x in range(4) if x != s]
        bufs = [x * 16 for x in others]
        for src, B in zip(others, bufs):
            a(f"s_add_u32 s51, s50, {src*8*4096}")
            for r4 in range(4):
                a(f"buffer_load_dwordx4 v[{B+4*r4}:{B+4*r4+3}], v{vDX}, s[{SP}:{SP+3}], s51 offen offset:{r4*1024} sc1")
        a("s_waitcnt vmcnt(12)")
        for q4 in range(4):
            for h in range(2):
                p = XRr + 2 * q4 + h
                a(f"v_lshlrev_b32 v{T0}, 16, v{p}"); a(f"v_and_b32 v{T1}, 0xffff0000, v{p}")
                a(f"v_add_f32 v{R+4*q4+2*h}, v{R+4*q4+2*h}, v{T0}"); a(f"v_add_f32 v{R+4*q4+2*h+1}, v{R+4*q4+2*h+1}, v{T1}")
        for n, B in enumerate(bufs):
            a(f"s_waitcnt vmcnt({8-4*n})")
            for r in range(16): a(f"v_add_f32 v{R+r}, v{R+r}, v{B+r}")
        for half in range(2):
            P = 72 + 4 * half
            for j in range(4): a(f"v_cvt_pk_bf16_f32 v{P+j}, v{R+8*half+2*j}, v{R+8*half+2*j+1}")
            a(f"v_permlane32_swap_b32 v{P}, v{P+2}"); a(f"v_permlane32_swap_b32 v{P+1}, v{P+3}")
            a(f"buffer_store_dwordx4 v[{P}:{P+3}], v{vOut}, s[{SO}:{SO+3}], s52 offen offset:{32*half}")
        a("s_branch L_g2_end")
        a.label(f"L_g2_fin{s}_skip")
    a.label("L_g2_end")
    a("s_endpgm")

def build(cfg, launches=("ln", "g1", "g2")):
    a = Asm()
    gen_ln(a); gen_g1(a, cfg); gen_g2(a, cfg)
    body = a.finalize()
    hdr = []
    L = {"ln": "; @launch kernel=ln_kernel grid=(256,1,1) block=(256,1,1) lds=256",
         "g1": f"; @launch kernel=g1_kernel grid=(256,1,1) block=(512,1,1) lds={G1_LDS}",
         "g2": f"; @launch kernel={KN} grid=(256,1,1) block=(512,1,1) lds={G2_LDS}"}
    for l in launches: hdr.append(L[l])
    hdr += ['.amdgcn_target "amdgcn-amd-amdhsa--gfx950"', ".text"]
    tail = ['.section .rodata,"a"', ".p2align 6", descriptor("ln_kernel", 104, 32), ".p2align 6", descriptor("g1_kernel", 256),
            ".p2align 6", descriptor(KN, 112, 64)]
    return "\n".join(hdr) + "\n" + body + "\n" + "\n".join(tail) + "\n"

if __name__ == "__main__":
    out = sys.argv[1]
    cfg = {}
    launches = ("ln", "g1", "g2")
    for kv in sys.argv[2:]:
        k, v = kv.split("=")
        if k == "launches": launches = v.split(",")
        else: cfg[k] = int(v)
    open(out, "w").write(build(cfg, launches))
    print("wrote", out)
```

```python
import struct
from asmlib import Asm, Ins

def f2u(x):
    return struct.unpack("<I", struct.pack("<f", x))[0]

class K:
    def __init__(self, a):
        self.a = a
        self.lq = []
        self.vq = []
        self.dry = False
        self.idx = 0
        self.rec = None
        self.forced = None
    def reset(self):
        self.lq = []; self.vq = []
    def raw(self, t):
        if not self.dry: self.a(t)
    def label(self, l):
        if not self.dry: self.a.label(l)
    def __call__(self, text, tag=None):
        for t in text.split("\n"):
            t = t.strip()
            if t: self._one(t, tag)
    def _wait(self, vm, lg):
        i = self.idx; self.idx += 1
        if self.rec is not None:
            r = self.rec.setdefault(i, [None, None])
            if vm is not None: r[0] = vm if r[0] is None else min(r[0], vm)
            if lg is not None: r[1] = lg if r[1] is None else min(r[1], lg)
        if self.forced is not None:
            f = self.forced.get(i, [None, None])
            if vm is not None: assert f[0] is not None and f[0] <= vm, "forced vm wait too weak"
            if lg is not None: assert f[1] is not None and f[1] <= lg, "forced lgkm wait too weak"
            vm, lg = f
        w = []
        if vm is not None:
            vm = min(vm, 63); w.append(f"vmcnt({vm})")
            if len(self.vq) > vm: self.vq = self.vq[len(self.vq) - vm:] if vm else []
        if lg is not None:
            lg = min(lg, 15); w.append(f"lgkmcnt({lg})")
            if len(self.lq) > lg: self.lq = self.lq[len(self.lq) - lg:] if lg else []
        if w and not self.dry: self.a("s_waitcnt " + " ".join(w))
    def _one(self, t, tag):
        I = Ins(t)
        if I.op == "s_waitcnt":
            raise ValueError("use wait helpers")
        use = I.src | I.dst
        li = max((i for i, d in enumerate(self.lq) if d & use), default=None)
        vi = max((i for i, (_, d) in enumerate(self.vq) if d & use), default=None)
        self._wait(None if vi is None else len(self.vq) - 1 - vi, None if li is None else len(self.lq) - 1 - li)
        if not self.dry: self.a(t)
        if I.kind == "ds": self.lq.append(set(I.dst))
        elif I.kind == "vmem": self.vq.append((tag, set(I.dst)))
    def wait_lgkm0(self, force=False):
        self._wait(None, 0 if (self.lq or force) else None)
    def wait_vm0(self, force=False):
        self._wait(0 if (self.vq or force) else None, None)
    def wait_vm(self, tag, lgkm0=False):
        vi = max((i for i, (tg, _) in enumerate(self.vq) if tg == tag), default=None)
        self._wait(None if vi is None else len(self.vq) - 1 - vi, 0 if (lgkm0 and self.lq) else None)
    def smem_wait(self):
        self._wait(None, 0)
    def loop(self, body, passes=3):
        assert self.rec is None and self.forced is None and not self.dry
        st = ([set(x) for x in self.lq], list(self.vq))
        self.dry = True; self.rec = {}
        for p in range(passes):
            self.idx = 0; body(self)
        merged = self.rec; self.rec = None
        self.lq, self.vq = [set(x) for x in st[0]], list(st[1])
        self.forced = merged
        self.dry = False; self.idx = 0; body(self)
        self.dry = True
        for p in range(passes):
            self.idx = 0; body(self)
        self.dry = False; self.forced = None

def srd(k, d, lo, hi, size, off=0):
    if off:
        k.raw(f"s_add_u32 s{d}, s{lo}, {off}")
        k.raw(f"s_addc_u32 s{d+1}, s{hi}, 0")
    else:
        k.raw(f"s_mov_b32 s{d}, s{lo}")
        k.raw(f"s_mov_b32 s{d+1}, s{hi}")
    k.raw(f"s_mov_b32 s{d+2}, {size}")
    k.raw(f"s_mov_b32 s{d+3}, 0x20000")

def header(a, name):
    a.raw(f".globl {name}")
    a.raw(".p2align 8")
    a.raw(f".type {name},@function")
    a.label(name)

def descriptor(name, vgpr, sgpr=102, accum=None):
    return "\n".join([
        f".amdhsa_kernel {name}",
        f"  .amdhsa_next_free_vgpr {vgpr}",
        f"  .amdhsa_next_free_sgpr {sgpr}",
        f"  .amdhsa_accum_offset {accum if accum else (vgpr + 3) // 4 * 4}",
        "  .amdhsa_group_segment_fixed_size 0",
        "  .amdhsa_kernarg_size 80",
        "  .amdhsa_user_sgpr_count 2",
        "  .amdhsa_user_sgpr_kernarg_segment_ptr 1",
        "  .amdhsa_system_sgpr_workgroup_id_x 1",
        "  .amdhsa_float_denorm_mode_32 3",
        ".end_amdhsa_kernel"])

def R(kind, b, n=4):
    return f"{kind}[{b}:{b+n-1}]" if n > 1 else f"{kind}{b}"

def spread(items, lo, hi, sid, earliest=None):
    n = len(items); out = []
    for k, (t, tag) in enumerate(items):
        pos = lo + (hi - lo) * k / max(n, 1)
        e = earliest[k] if earliest else 0
        out.append((max(pos, e), e, t, tag, sid))
    return out

def schedule(mf, fillers, cap=1):
    pend = sorted(fillers, key=lambda f: f[0])
    out = []
    for i, m in enumerate(mf):
        out.append((m, None))
        cnt = 0; j = 0; blocked = set()
        left = len(mf) - i
        c = max(cap, -(-len(pend) // left))
        while j < len(pend) and cnt < c:
            pos, e, t, tag, sid = pend[j]
            if pos > i and len(pend) <= left - 1: break
            if e <= i and sid not in blocked:
                out.append((t, tag)); pend.pop(j); cnt += 1; blocked.add(sid)
            else:
                blocked.add(sid); j += 1
    for pos, e, t, tag, sid in pend: out.append((t, tag))
    return out
```

```python
import sys, os, math
sys.path.insert(0, os.path.dirname(__file__))
from asmlib import Asm
from fw import *

KN = "parallel_sum__sliding_local_dilated__glu_gated_glu__prompt_kernel"
XN_OFF = 0
ACT_OFF = 0x400000
MFS = 144 * 1024
ACT_BYTES = 128 * MFS
PART_OFF = 0x2000000
PART_BYTES = 64 * 4 * 4 * 4 * 4096
FLAG_OFF = 0x6000000
FLAG_BYTES = 64 * 4 * 64
PROF_OFF = 0x7000000
LOG2E = 1.4426950408889634
MF = "v_mfma_f32_16x16x32_bf16"

def stamp(k, cfg, vp, idx, st=96):
    if not cfg.get("prof"): return
    k.raw(f"s_memrealtime s[{st}:{st+1}]"); k.raw(f"s_memtime s[{st+2}:{st+3}]")
    k.smem_wait()
    if isinstance(idx, int):
        k.raw(f"v_writelane_b32 v{vp}, s{st}, {idx}"); k.raw(f"v_writelane_b32 v{vp}, s{st+2}, {32+idx}")
    else:
        k.raw(f"s_lshl_b64 exec, 1, {idx}"); k.raw(f"v_mov_b32 v{vp}, s{st}"); k.raw("s_lshl_b64 exec, exec, 32")
        k.raw(f"v_mov_b32 v{vp}, s{st+2}"); k.raw("s_mov_b64 exec, -1")

def prof_store(k, cfg, vp, vt, sW, kidx, ws=(6, 7), st=96):
    if not cfg.get("prof"): return
    k.wait_vm0(force=True)
    stamp(k, cfg, vp, 31, st)
    srd(k, st, ws[0], ws[1], 0x100000, PROF_OFF + kidx * 0x100000)
    k.raw(f"v_mbcnt_lo_u32_b32 v{vt}, -1, 0"); k.raw(f"v_mbcnt_hi_u32_b32 v{vt}, -1, v{vt}"); k.raw(f"v_lshlrev_b32 v{vt}, 2, v{vt}")
    k.raw(f"s_lshl_b32 s{st+4}, s2, 3"); k.raw(f"s_add_u32 s{st+4}, s{st+4}, s{sW}"); k.raw(f"s_lshl_b32 s{st+4}, s{st+4}, 8")
    k.raw(f"buffer_store_dword v{vp}, v{vt}, s[{st}:{st+3}], s{st+4} offen")

def xlane_reduce(a, op, v, t):
    a(f"v_mov_b32 v{t}, v{v}")
    a(f"v_permlane16_swap_b32 v{v}, v{t}")
    a(f"{op} v{v}, v{v}, v{t}")
    a(f"v_mov_b32 v{t}, v{v}")
    a(f"v_permlane32_swap_b32 v{v}, v{t}")
    a(f"{op} v{v}, v{v}, v{t}")

def wg_decode(k, sMT, sS, sJ, t0):
    k.raw(f"s_and_b32 s{t0}, s2, 7"); k.raw(f"s_lshr_b32 s{sS}, s{t0}, 1")
    k.raw(f"s_and_b32 s{t0}, s{t0}, 1"); k.raw(f"s_lshl_b32 s{t0}, s{t0}, 2")
    k.raw(f"s_bfe_u32 s{sMT}, s2, {3 | (2 << 16)}"); k.raw(f"s_add_u32 s{sMT}, s{sMT}, s{t0}")
    k.raw(f"s_lshr_b32 s{sJ}, s2, 5")

def gen_ln(a):
    k = K(a)
    header(a, "ln_kernel")
    a("s_cmp_ge_u32 s2, 256"); a("s_cbranch_scc1 L_ln_end")
    a("s_load_dwordx2 s[4:5], s[0:1], 0")
    a("s_load_dwordx2 s[6:7], s[0:1], 72")
    a("v_and_b32 v1, 63, v0")
    a("v_lshrrev_b32 v2, 6, v0")
    a("v_and_b32 v3, 7, v1")
    a("v_lshrrev_b32 v4, 3, v1")
    a("v_lshlrev_b32 v5, 11, v3")
    a("v_lshl_add_u32 v5, v4, 4, v5")
    a("v_lshl_add_u32 v5, v2, 9, v5")
    a("s_lshl_b32 s3, s2, 14")
    a("s_waitcnt lgkmcnt(0)")
    srd(k, 8, 4, 5, 2048 * 2048)
    for i in range(4):
        a(f"buffer_load_dwordx4 v[{8+4*i}:{11+4*i}], v5, s[8:11], s3 offen offset:{128*i}")
    srd(k, 12, 6, 7, 2048 * 2048, XN_OFF)
    srd(k, 16, 6, 7, FLAG_BYTES, FLAG_OFF)
    a("s_cmp_ge_u32 s2, 4"); a("s_cbranch_scc1 L_ln_noflag")
    for r in range(60, 64): a(f"v_mov_b32 v{r}, 0")
    a("v_lshlrev_b32 v6, 4, v0"); a("s_lshl_b32 s20, s2, 12")
    a("buffer_store_dwordx4 v[60:63], v6, s[16:19], s20 offen")
    a.label("L_ln_noflag")
    a("v_lshlrev_b32 v6, 13, v2")
    a("v_lshl_add_u32 v6, v4, 8, v6")
    a("v_lshl_add_u32 v6, v3, 4, v6")
    a("s_lshr_b32 s20, s2, 1"); a("s_lshl_b32 s20, s20, 15")
    a("s_and_b32 s21, s2, 1"); a("s_lshl_b32 s21, s21, 7")
    a("s_add_u32 s20, s20, s21")
    a("s_add_u32 s22, s20, 4096")
    a("v_lshlrev_b32 v7, 4, v3")
    a("v_lshl_add_u32 v64, v2, 2, v7")
    a("s_waitcnt vmcnt(0)")
    for i in range(16):
        a(f"v_lshlrev_b32 v{24+2*i}, 16, v{8+i}")
        a(f"v_and_b32 v{25+2*i}, 0xffff0000, v{8+i}")
    def reduce32(src_fn, dst, ldsoff):
        for i in range(16): a(f"v_add_f32 v{8+i}, v{src_fn(2*i)}, v{src_fn(2*i+1)}")
        n = 16
        while n > 1:
            for i in range(n // 2): a(f"v_add_f32 v{8+i}, v{8+i}, v{8+i+n//2}")
            n //= 2
        a(f"v_add_f32_dpp v{dst}, v8, v8 row_ror:8 row_mask:0xf bank_mask:0xf")
        xlane_reduce(a, "v_add_f32", dst, 9)
        a(f"ds_write_b32 v64, v{dst} offset:{ldsoff}")
        a("s_waitcnt lgkmcnt(0)")
        a("s_barrier")
        a(f"ds_read_b128 v[8:11], v7 offset:{ldsoff}")
        a("s_waitcnt lgkmcnt(0)")
        a("v_add_f32 v8, v8, v9"); a("v_add_f32 v10, v10, v11"); a(f"v_add_f32 v{dst}, v8, v10")
        a(f"v_mul_f32 v{dst}, {f2u(1.0/1024)}, v{dst}")
    reduce32(lambda i: 24 + i, 56, 0)
    for i in range(32):
        a(f"v_sub_f32 v{66+i}, v{24+i}, v56")
        a(f"v_mul_f32 v{66+i}, v{66+i}, v{66+i}")
    reduce32(lambda i: 66 + i, 57, 128)
    a("v_cvt_pk_bf16_f32 v58, v56, v57")
    a("v_lshlrev_b32 v56, 16, v58")
    a("v_and_b32 v57, 0xffff0000, v58")
    a(f"v_add_f32 v57, {f2u(1e-5)}, v57")
    a("v_cvt_pk_bf16_f32 v57, v57, v57"); a("v_and_b32 v57, 0xffff0000, v57")
    a("v_sqrt_f32 v57, v57")
    a("v_cvt_pk_bf16_f32 v57, v57, v57"); a("v_and_b32 v57, 0xffff0000, v57")
    a("v_rcp_f32 v58, v57")
    for i in range(16):
        x0, x1 = 24 + 2 * i, 25 + 2 * i
        a(f"v_sub_f32 v{x0}, v{x0}, v56"); a(f"v_sub_f32 v{x1}, v{x1}, v56")
        a(f"v_cvt_pk_bf16_f32 v{66}, v{x0}, v{x1}")
        a(f"v_lshlrev_b32 v{x0}, 16, v66"); a(f"v_and_b32 v{x1}, 0xffff0000, v66")
        for x, t in ((x0, 67), (x1, 69)):
            a(f"v_mul_f32 v{t}, v{x}, v58")
            a(f"v_fma_f32 v{t+1}, -v{t}, v57, v{x}")
            a(f"v_fma_f32 v{t}, v{t+1}, v58, v{t}")
        a(f"v_cvt_pk_bf16_f32 v{8+i}, v67, v69")
    for i in range(4):
        a(f"buffer_store_dwordx4 v[{8+4*i}:{11+4*i}], v6, s[12:15], s{20 + 2*(i//2)} offen offset:{2048*(i%2)}")
    a.label("L_ln_end")
    a("s_endpgm")

XR, HR = 0, 65536
QR = HR + 4096
GR = QR + 4 * 7168
UR = GR + 4 * 7168
G1_LDS = UR + 4 * 7168
QKV_K = 18432; PSTR = 9216

class G1:
    sMT, sNT, sW, sMH, sNH, sODD, sS, sJ = 12, 13, 14, 15, 16, 17, 18, 19
    SX, SA = 20, 24
    SD = 28
    sCur, sStr, sMb = 48, 53, 58
    sOX, sMXb, sOH, sCnt = 63, 64, 65, 66
    vDX, vDW = 192, 196
    vX, vWa, vWb, vWc, vLane, vHX = 201, 202, 203, 204, 205, 206
    vP = 207
    T = 208
    HACC, XB, WB, HXB = 128, 136, 200, 248

def acc(t, i):
    f = t * 8 + i
    return ("v", 4 * f) if f < 48 else ("a", 4 * (f - 48))

def gen_g1(a, cfg):
    g = G1; k = K(a)
    NPRE = cfg.get("g1_npre", 2)
    T0, T1, T2, T3 = g.T, g.T + 1, g.T + 2, g.T + 3
    header(a, "g1_kernel")
    a("s_cmp_ge_u32 s2, 256"); a("s_cbranch_scc1 L_g1_end")
    if cfg.get("prof"): a(f"v_mov_b32 v{g.vP}, 0")
    stamp(k, cfg, g.vP, 0)
    a("s_load_dwordx2 s[4:5], s[0:1], 8")
    a("s_load_dwordx4 s[8:11], s[0:1], 32")
    a("s_load_dwordx2 s[6:7], s[0:1], 72")
    a(f"v_and_b32 v{g.vLane}, 63, v0")
    a(f"v_lshrrev_b32 v{T0}, 6, v0")
    a(f"v_readfirstlane_b32 s{g.sW}, v{T0}")
    wg_decode(k, g.sMT, g.sS, g.sJ, 67)
    a(f"s_lshl_b32 s{g.sNT}, s{g.sS}, 3"); a(f"s_add_u32 s{g.sNT}, s{g.sNT}, s{g.sJ}")
    a(f"s_and_b32 s{g.sODD}, s{g.sJ}, 1")
    a(f"s_and_b32 s{g.sMH}, s{g.sW}, 1"); a(f"s_lshr_b32 s{g.sNH}, s{g.sW}, 1")
    a(f"v_lshlrev_b32 v{g.vDX}, 4, v{g.vLane}")
    for i in range(1, 4): a(f"v_add_u32 v{g.vDX+i}, {i*32768}, v{g.vDX}")
    a(f"s_lshl_b32 s{g.sOX}, s{g.sMT}, 2"); a(f"s_add_u32 s{g.sOX}, s{g.sOX}, s{g.sW}"); a(f"s_lshl_b32 s{g.sOX}, s{g.sOX}, 17")
    a(f"s_lshl_b32 s{g.sMXb}, s{g.sW}, 12")
    if XR: a(f"s_add_u32 s{g.sMXb}, s{g.sMXb}, {XR}")
    a(f"s_lshl_b32 s{g.sOH}, s{g.sMT}, 19"); a(f"s_sub_u32 s{g.sOH}, s{g.sOH}, 32768")
    a(f"s_cmp_eq_u32 s{g.sMT}, 0"); a(f"s_cselect_b32 s{g.sOH}, 0x40000000, s{g.sOH}")
    a("s_waitcnt lgkmcnt(0)")
    srd(k, g.SX, 6, 7, 2048 * 2048, XN_OFF)
    def xdma(q):
        L = []
        for i in range(4):
            L += [(f"s_add_u32 m0, s{g.sMXb}, {q*16384 + i*1024}", None),
                  (f"buffer_load_dwordx4 v{g.vDX+i}, s[{g.SX}:{g.SX+3}], s{g.sOX} offen lds", q)]
        L.append((f"s_add_u32 s{g.sOX}, s{g.sOX}, 1024", None))
        return L
    def hdma(q):
        return [(f"s_mov_b32 m0, {HR + q*1024}", None),
                (f"buffer_load_dwordx4 v{g.vDX}, s[{g.SX}:{g.SX+3}], s{g.sOH} offen lds", q),
                (f"s_add_u32 s{g.sOH}, s{g.sOH}, 1024", None)]
    def wdma(q):
        L = []
        for d in range(5):
            S = g.SD + 4 * d
            L += [(f"s_add_u32 m0, s{g.sMb+d}, {q*7168}", None),
                  (f"buffer_load_dwordx4 v{g.vDW+d}, s[{S}:{S+3}], s{g.sCur+d} offen lds", q),
                  (f"s_add_u32 s{g.sCur+d}, s{g.sCur+d}, s{g.sStr+d}", None)]
        return L
    for t, tag in xdma(0): k(t, tag)
    for d in range(5):
        S = g.SD + 4 * d; vD = g.vDW + d
        a(f"s_add_u32 s67, s{g.sW}, {4*d}")
        if d <= 1:
            a("s_cmp_ge_u32 s67, 6"); a(f"s_cbranch_scc1 L_g1_d{d}_gu")
            srd(k, S, 4, 5, 1024 * 6144)
            a("s_lshl_b32 s68, s67, 6")
            a(f"v_add_u32 v{T0}, s68, v{g.vLane}")
            a(f"v_mul_u32_u24 v{T1}, 5462, v{T0}"); a(f"v_lshrrev_b32 v{T1}, 16, v{T1}")
            a(f"v_mul_u32_u24 v{T2}, 12, v{T1}"); a(f"v_sub_u32 v{T2}, v{T0}, v{T2}")
            a(f"v_lshrrev_b32 v{T3}, 2, v{T2}"); a(f"v_lshlrev_b32 v{vD}, 11, v{T3}")
            a(f"v_lshrrev_b32 v{T3}, 1, v{T1}"); a(f"v_and_b32 v{T3}, 2, v{T3}")
            a(f"v_xor_b32 v{T2}, v{T2}, v{T3}"); a(f"v_and_b32 v{T2}, 3, v{T2}")
            a(f"v_lshl_add_u32 v{vD}, v{T2}, 4, v{vD}")
            a(f"s_lshl_b32 s{g.sCur+d}, s{g.sNT}, 6"); a(f"s_mov_b32 s{g.sStr+d}, {32*6144}")
            a(f"s_lshl_b32 s{g.sMb+d}, s67, 10"); a(f"s_add_u32 s{g.sMb+d}, s{g.sMb+d}, {QR}")
            a("s_movk_i32 s69, 6144")
            a(f"s_branch L_g1_d{d}_k")
            a.label(f"L_g1_d{d}_gu")
        a("s_cmp_ge_u32 s67, 13")
        a(f"s_cselect_b32 s{S}, s10, s8"); a(f"s_cselect_b32 s{S+1}, s11, s9")
        a("s_cselect_b32 s68, 13, 6")
        a(f"s_mov_b32 s{g.sMb+d}, {GR}"); a(f"s_cselect_b32 s{g.sMb+d}, {UR}, s{g.sMb+d}")
        a(f"s_mov_b32 s{S+2}, {1024*7168}"); a(f"s_mov_b32 s{S+3}, 0x20000")
        a("s_sub_u32 s67, s67, s68")
        a("s_lshl_b32 s68, s67, 10"); a(f"s_add_u32 s{g.sMb+d}, s{g.sMb+d}, s68")
        a("s_lshl_b32 s68, s67, 6")
        a(f"v_add_u32 v{T0}, s68, v{g.vLane}")
        a(f"v_mul_u32_u24 v{T1}, 4682, v{T0}"); a(f"v_lshrrev_b32 v{T1}, 16, v{T1}")
        a(f"v_mul_u32_u24 v{T2}, 14, v{T1}"); a(f"v_sub_u32 v{T2}, v{T0}, v{T2}")
        a(f"v_lshlrev_b32 v{vD}, 4, v{T2}")
        a(f"s_mul_i32 s{g.sCur+d}, s{g.sNT}, 224"); a(f"s_mov_b32 s{g.sStr+d}, {32*7168}")
        a("s_movk_i32 s69, 7168")
        a.label(f"L_g1_d{d}_k")
        a(f"v_bfe_u32 v{T2}, v{T1}, 2, 2"); a(f"v_lshlrev_b32 v{T2}, 3, v{T2}")
        a(f"v_lshrrev_b32 v{T3}, 4, v{T1}"); a(f"v_lshl_add_u32 v{T2}, v{T3}, 2, v{T2}")
        a(f"v_and_b32 v{T3}, 3, v{T1}"); a(f"v_add_u32 v{T2}, v{T2}, v{T3}")
        a(f"v_mad_u32_u24 v{vD}, v{T2}, s69, v{vD}")
    kpro = (list(k.lq), list(k.vq))
    srd(k, g.SA, 6, 7, ACT_BYTES, ACT_OFF)
    a(f"s_cmp_eq_u32 s{g.sNH}, 1"); a("s_cbranch_scc1 L_g1_p2")
    a(f"s_cmp_eq_u32 s{g.sMH}, 1"); a("s_cbranch_scc1 L_g1_p1")

    XBUF = [g.XB, g.XB + 32]
    def wreg(t, par): return g.WB + 4 * t if t < 8 else g.WB + 32 + 4 * (t - 8) + 8 * par
    def wsrc(nh, t):
        if nh == 0:
            if t < 6: return (g.vWa if t % 2 == 0 else g.vWb, t * 32, 192)
            return (g.vWc, (t % 2) * 32 + (UR - GR if t >= 8 else 0), 224)
        u = t >= 5; tt = t % 5
        return (g.vWa if tt < 4 else g.vWb, (tt * 32 if tt < 4 else 0) + (UR - GR if u else 0), 224)
    def wread(nh, t, q, par):
        v, o, st = wsrc(nh, t); d = wreg(t, par); o += q * 7168
        return [(f"ds_read_b64_tr_b16 a[{d}:{d+1}], v{v} offset:{o}", None),
                (f"ds_read_b64_tr_b16 a[{d+2}:{d+3}], v{v} offset:{o+16*st}", None)]
    def xread(nh, q, par):
        L = [(f"ds_read_b128 {R('a', XBUF[par]+4*i)}, v{g.vX} offset:{q*16384+i*1024}", None) for i in range(8)]
        if nh == 0: L.append((f"ds_read_b128 {R('a', g.HXB+4*par)}, v{g.vHX} offset:{q*1024}", None))
        return L

    for path in range(3):
        nh = 1 if path == 2 else 0
        hsel = (2, 4, None)[path]
        if path: a.label(f"L_g1_p{path}")
        k.lq, k.vq = list(kpro[0]), list(kpro[1])
        def dma(q):
            x = xdma(q); w = wdma(q); h = hdma(q) if nh else []
            return x + w + h
        for t, tag in wdma(0) + (hdma(0) if nh else []): k(t, tag)
        for q in range(1, 4):
            for t, tag in dma(q): k(t, tag)
        L = g.vLane
        a(f"s_lshl_b32 s67, s{g.sMH}, 13"); a(f"v_add_u32 v{g.vX}, s67, v{g.vDX}")
        if XR: a(f"v_add_u32 v{g.vX}, {XR}, v{g.vX}")
        a(f"v_add_u32 v{g.vHX}, {HR}, v{g.vDX}")
        a(f"v_lshrrev_b32 v{T0}, 4, v{L}"); a(f"v_bfe_u32 v{T1}, v{L}, 2, 2"); a(f"v_lshl_add_u32 v{T1}, v{T0}, 2, v{T1}")
        a(f"v_and_b32 v{T2}, 3, v{L}"); a(f"v_lshlrev_b32 v{T2}, 3, v{T2}")
        a(f"v_mul_u32_u24 v{T3}, 224, v{T1}"); a(f"v_add_u32 v{T3}, v{T3}, v{T2}")
        if nh == 0:
            a(f"v_mul_u32_u24 v{g.vWa}, 192, v{T1}"); a(f"v_add_u32 v{g.vWa}, v{g.vWa}, v{T2}"); a(f"v_add_u32 v{g.vWa}, {QR}, v{g.vWa}")
            a(f"v_and_b32 v{T0}, 1, v{T0}"); a(f"v_lshlrev_b32 v{T0}, 5, v{T0}")
            a(f"v_sub_u32 v{g.vWb}, v{g.vWa}, v{T0}"); a(f"v_add_u32 v{g.vWa}, v{g.vWa}, v{T0}")
            a(f"s_mul_i32 s67, s{g.sODD}, 160"); a(f"s_add_u32 s67, s67, {GR}"); a(f"v_add_u32 v{g.vWc}, s67, v{T3}")
        else:
            a(f"s_lshl_b32 s67, s{g.sODD}, 5"); a(f"s_sub_u32 s67, {GR+64}, s67"); a(f"v_add_u32 v{g.vWa}, s67, v{T3}")
            a(f"s_mul_i32 s67, s{g.sODD}, 192"); a(f"s_sub_u32 s67, {GR+192}, s67"); a(f"v_add_u32 v{g.vWb}, s67, v{T3}")
        for r in range(192): a(f"v_mov_b32 v{r}, 0")
        for r in range(136 if nh == 0 else 128): a(f"v_accvgpr_write_b32 a{r}, 0")
        stamp(k, cfg, g.vP, 1)
        k.wait_vm(0); a("s_barrier")
        stamp(k, cfg, g.vP, 2)
        for t, _ in xread(nh, 0, 0): k(t)
        for t in range(10):
            for x, _ in wread(nh, t, 0, 0): k(x)

        def phase(k, q, do_dma, last):
            par = q & 1
            M = []; free = {}
            for t in range(10):
                for i in range(8):
                    kd, c = acc(t, i)
                    M.append(f"{MF} {R(kd, c)}, {R('a', wreg(t, par))}, {R('a', XBUF[par]+4*i)}, {R(kd, c)}")
                if hsel is not None and t in (hsel, hsel + 1):
                    c = g.HACC + 4 * (t - hsel)
                    M.append(f"{MF} {R('a', c)}, {R('a', wreg(t, par))}, {R('a', g.HXB+4*par)}, {R('a', c)}")
                free[t] = len(M)
            for m in M[:NPRE]: k(m)
            k.wait_vm((q + 1) % 4, lgkm0=True); k.raw("s_barrier")
            if last:
                for m in M[NPRE:]: k(m)
                return
            n = len(M) - NPRE
            F = spread(xread(nh, (q + 1) % 4, par ^ 1), 0, n - 14, "x")
            wl, we = [], []
            for t in (8, 9, 0, 1, 2, 3, 4, 5, 6, 7):
                wl += wread(nh, t, (q + 1) % 4, par ^ 1); e = 0 if t >= 8 else free[t] - NPRE; we += [e, e]
            F += spread(wl, 1, n - 12, "w", we)
            if do_dma: F += spread(dma(q), 0, n - 1, "d")
            for t, tag in schedule(M[NPRE:], F): k(t, tag)
        a(f"s_mov_b32 s{g.sCnt}, 0")
        def body(k):
            k.label(f"L_g1_loop{path}")
            for q in range(4): phase(k, q, True, False)
            if cfg.get("prof"):
                k.raw(f"s_add_u32 s100, s{g.sCnt}, 3"); stamp(k, cfg, g.vP, "s100")
            k.raw(f"s_add_u32 s{g.sCnt}, s{g.sCnt}, 1"); k.raw(f"s_cmp_lt_u32 s{g.sCnt}, 7"); k.raw(f"s_cbranch_scc1 L_g1_loop{path}")
        k.loop(body)
        for q in range(4): phase(k, q, False, q == 3)
        stamp(k, cfg, g.vP, 10)
        if path == 0:
            a("s_branch L_g1_epi0")
        else:
            if path == 1: a.label("L_g1_epi0")
            g1_epilogue(k, cfg, nh)
            stamp(k, cfg, g.vP, 13)
            prof_store(k, cfg, g.vP, g.T, g.sW, 0)
            if path == 1: a("s_branch L_g1_end")
    a.label("L_g1_end")
    a("s_endpgm")

def glu_block(k, F, tmp, P, store):
    L = []
    G = []; U = []
    n = 0
    for (gk, gr), (uk, ur) in F:
        for j in range(4):
            if gk == "a":
                L.append(f"v_accvgpr_read_b32 v{tmp+n}, a{gr+j}"); G.append(tmp + n); n += 1
            else: G.append(gr + j)
            if uk == "a":
                L.append(f"v_accvgpr_read_b32 v{tmp+n}, a{ur+j}"); U.append(tmp + n); n += 1
            else: U.append(ur + j)
    for x in G: L.append(f"v_mul_f32 v{x}, s70, v{x}")
    for x in G: L.append(f"v_exp_f32 v{x}, v{x}")
    for x in G: L.append(f"v_add_f32 v{x}, 1.0, v{x}")
    for x in G: L.append(f"v_rcp_f32 v{x}, v{x}")
    for x, u in zip(G, U): L.append(f"v_mul_f32 v{x}, v{x}, v{u}")
    for j in range(4): L.append(f"v_cvt_pk_bf16_f32 v{P+j}, v{G[2*j]}, v{G[2*j+1]}")
    L.append(f"v_permlane16_swap_b32 v{P}, v{P+2}")
    L.append(f"v_permlane16_swap_b32 v{P+1}, v{P+3}")
    L += store(P)
    return L

def g1_epilogue(k, cfg, nh):
    g = G1; a = k.raw
    L = g.vLane; SA = g.SA
    T0, T1, T2, T3 = g.T, g.T + 1, g.T + 2, g.T + 3
    vI, vG, vST = 192, 193, 194
    a(f"s_lshl_b32 s64, s{g.sMT}, 1"); a(f"s_add_u32 s64, s64, s{g.sMH}"); a(f"s_mul_i32 s64, s64, {8*MFS}")
    a(f"s_lshr_b32 s67, s{g.sJ}, 1"); a("s_mul_i32 s67, s67, 9"); a(f"s_mul_i32 s68, s{g.sS}, 36"); a("s_add_u32 s67, s67, s68")
    a("s_lshl_b32 s67, s67, 10"); a("s_add_u32 s64, s64, s67")
    a(f"s_mov_b32 s70, {f2u(-LOG2E)}")
    a(f"v_and_b32 v{vI}, 15, v{L}"); a(f"v_lshrrev_b32 v{vG}, 4, v{L}")
    vC = 195
    a(f"v_and_b32 v{T0}, 1, v{vG}"); a(f"v_lshrrev_b32 v{T1}, 1, v{vG}"); a(f"v_lshl_add_u32 v{vC}, v{T0}, 1, v{T1}")
    a(f"v_lshlrev_b32 v{vST}, 4, v{vI}"); a(f"v_lshl_add_u32 v{vST}, v{vC}, 8, v{vST}")
    def st_full(i, sreg):
        def store(P):
            return [f"s_add_u32 s66, s{sreg}, {i*MFS}",
                    f"buffer_store_dwordx4 v[{P}:{P+3}], v{vST}, s[{SA}:{SA+3}], s66 offen"]
        return store
    if nh == 1:
        for j in range(4): a(f"v_mov_b32 v{T0+j}, 0")
        a(f"v_lshrrev_b32 v{196}, 5, v{L}"); a(f"v_mul_u32_u24 v196, {PSTR}, v196")
        a(f"v_and_b32 v197, 31, v{L}"); a(f"v_lshl_add_u32 v196, v197, 4, v196")
        k(f"ds_write_b128 v196, v[{T0}:{T0+3}] offset:{2*QKV_K}")
        k.wait_lgkm0(); a("s_barrier")
        a(f"s_mul_i32 s67, s{g.sODD}, 3072"); a("s_add_u32 s71, s64, s67"); a("s_add_u32 s71, s71, 2048"); a("s_add_u32 s72, s71, 1024")
        a(f"s_lshl_b32 s67, s{g.sODD}, 9"); a("s_add_u32 s73, s64, s67"); a("s_add_u32 s73, s73, 4096")
        vSS = 196
        a(f"v_and_b32 v{T0}, 1, v{vG}"); a(f"v_mul_u32_u24 v{vSS}, {MFS}, v{T0}")
        a(f"v_lshrrev_b32 v{T0}, 1, v{vG}"); a(f"v_lshl_add_u32 v{vSS}, v{T0}, 8, v{vSS}"); a(f"v_lshl_add_u32 v{vSS}, v{vI}, 4, v{vSS}")
        n = 0
        for i in range(8):
            for b in range(2):
                F = [(acc(2*b + f, i), acc(5 + 2*b + f, i)) for f in range(2)]
                for x in glu_block(k, F, 208 + 24 * (n % 2), 224 + 24 * (n % 2) + 4 * ((n // 2) % 2), st_full(i, 71 + b)): k(x)
                n += 1
            if i % 2 == 1:
                F = [(acc(4, i - 1 + f), acc(9, i - 1 + f)) for f in range(2)]
                def store(P, i=i):
                    return [f"s_add_u32 s66, s73, {(i-1)*MFS}",
                            f"buffer_store_dwordx4 v[{P}:{P+3}], v{vSS}, s[{SA}:{SA+3}], s66 offen"]
                for x in glu_block(k, F, 208 + 24 * (n % 2), 224 + 24 * (n % 2) + 4 * ((n // 2) % 2), store): k(x)
                n += 1
        return
    vA, vAH = 196, 197
    a(f"v_and_b32 v{T0}, 1, v{vI}"); a(f"v_mul_u32_u24 v{vA}, {PSTR}, v{T0}")
    a(f"v_lshrrev_b32 v{T0}, 1, v{vI}"); a(f"v_lshl_add_u32 v{vA}, v{T0}, 6, v{vA}")
    a(f"v_lshrrev_b32 v{T0}, 3, v{vI}"); a(f"v_lshlrev_b32 v{T0}, 5, v{T0}"); a(f"v_lshlrev_b32 v{T1}, 4, v{vC}")
    a(f"v_xor_b32 v{T0}, v{T0}, v{T1}"); a(f"v_add_u32 v{vA}, v{vA}, v{T0}")
    a(f"s_mul_i32 s67, s{g.sMH}, {QKV_K}"); a(f"s_add_u32 s67, s67, {QKV_K + 512}"); a(f"v_add_u32 v{vAH}, s67, v{vA}")
    a(f"s_lshl_b32 s67, s{g.sMH}, 12"); a("s_add_u32 s67, s67, 1024"); a(f"v_add_u32 v{vA}, s67, v{vA}")
    n = 0
    for kind in (1, 2, 0):
        for i in range(8):
            P = 208 + 4 * (n % 8); n += 1
            r0 = acc(2 * kind, i)[1]; r1 = acc(2 * kind + 1, i)[1]
            k(f"v_cvt_pk_bf16_f32 v{P}, v{r0}, v{r0+1}"); k(f"v_cvt_pk_bf16_f32 v{P+1}, v{r0+2}, v{r0+3}")
            k(f"v_cvt_pk_bf16_f32 v{P+2}, v{r1}, v{r1+1}"); k(f"v_cvt_pk_bf16_f32 v{P+3}, v{r1+2}, v{r1+3}")
            k(f"v_permlane16_swap_b32 v{P}, v{P+2}"); k(f"v_permlane16_swap_b32 v{P+1}, v{P+3}")
            k(f"ds_write_b128 v{vA}, v[{P}:{P+3}] offset:{kind*QKV_K + i*512}")
    for j in range(8): k(f"v_accvgpr_read_b32 v{240+j}, a{g.HACC+j}")
    P = 248
    for j in range(4): k(f"v_cvt_pk_bf16_f32 v{P+j}, v{240+2*j}, v{241+2*j}")
    k(f"v_permlane16_swap_b32 v{P}, v{P+2}"); k(f"v_permlane16_swap_b32 v{P+1}, v{P+3}")
    k(f"ds_write_b128 v{vAH}, v[{P}:{P+3}]")
    vKQ, vV0, vV1, vO, vNEG = 198, 199, 200, 201, 202
    a(f"v_lshlrev_b32 v{vKQ}, 6, v{vI}")
    a(f"v_bfe_u32 v{T0}, v{L}, 2, 1"); a(f"v_lshlrev_b32 v{T0}, 5, v{T0}")
    a(f"v_lshlrev_b32 v{T1}, 4, v{vG}"); a(f"v_xor_b32 v{T0}, v{T0}, v{T1}"); a(f"v_add_u32 v{vKQ}, v{vKQ}, v{T0}")
    a(f"s_lshl_b32 s67, s{g.sMH}, 12"); a(f"v_add_u32 v{vKQ}, s67, v{vKQ}")
    a(f"v_lshrrev_b32 v{T0}, 2, v{L}"); a(f"v_lshlrev_b32 v{vV0}, 6, v{T0}")
    a(f"v_and_b32 v{T0}, 1, v{vG}"); a(f"v_lshl_add_u32 v{vV0}, v{T0}, 5, v{vV0}")
    a(f"v_and_b32 v{T0}, 3, v{L}"); a(f"v_lshl_add_u32 v{vV0}, v{T0}, 3, v{vV0}")
    a(f"v_add_u32 v{vV0}, s67, v{vV0}"); a(f"v_xor_b32 v{vV1}, 32, v{vV0}")
    a(f"v_lshrrev_b32 v{T0}, 3, v{vI}"); a(f"v_mul_u32_u24 v{vO}, {MFS}, v{T0}")
    a(f"v_lshl_add_u32 v{vO}, v{vC}, 8, v{vO}")
    a(f"v_and_b32 v{T0}, 7, v{vI}"); a(f"v_lshl_add_u32 v{vO}, v{T0}, 5, v{vO}")
    a(f"v_mov_b32 v{vNEG}, {f2u(-1e30)}")
    MA, MB, MA0 = 72, 80, 88
    a(f"v_add_u32 v{T1}, 9, v{vI}")
    for rr in range(4):
        a(f"v_lshl_add_u32 v{T0}, v{vG}, 2, {rr}")
        a(f"v_cmp_ge_u32 s[{MA+2*rr}:{MA+2*rr+1}], v{T0}, v{T1}")
        a(f"v_sub_u32 v{T2}, v{vI}, v{T0}")
        a(f"v_cmp_ge_u32 s[{MB+2*rr}:{MB+2*rr+1}], 7, v{T2}")
    a(f"s_or_b32 s67, s{g.sMT}, s{g.sMH}"); a("s_cmp_eq_u32 s67, 0"); a("s_cselect_b64 s[68:69], 0, -1")
    for rr in range(4): a(f"s_and_b64 s[{MA0+2*rr}:{MA0+2*rr+1}], s[{MA+2*rr}:{MA+2*rr+1}], s[68:69]")
    a(f"s_mov_b32 s71, {f2u(LOG2E / math.sqrt(32.0))}")
    a(f"s_lshl_b32 s67, s{g.sODD}, 13"); a("s_add_u32 s65, s64, s67")
    a(f"s_mul_i32 s67, s{g.sODD}, 6144"); a("s_add_u32 s63, s64, s67"); a("s_add_u32 s63, s63, 1024")
    k.wait_lgkm0(); a("s_barrier")
    stamp(k, cfg, g.vP, 11)
    def unit(bb, par, B):
        KA, KB, Q, V0, V1, SAa, SBb, P, O0, O1, M, T, S = B, B+4, B+8, B+12, B+16, B+20, B+24, B+28, B+32, B+36, B+40, B+41, B+42
        ob = par * PSTR + bb * 1024
        Lr = [f"ds_read_b128 v[{KA}:{KA+3}], v{vKQ} offset:{QKV_K+ob}",
             f"ds_read_b128 v[{KB}:{KB+3}], v{vKQ} offset:{QKV_K+ob+1024}",
             f"ds_read_b128 v[{Q}:{Q+3}], v{vKQ} offset:{ob+1024}",
             f"ds_read_b64_tr_b16 v[{V0}:{V0+1}], v{vV0} offset:{2*QKV_K+ob}",
             f"ds_read_b64_tr_b16 v[{V0+2}:{V0+3}], v{vV0} offset:{2*QKV_K+ob+1024}",
             f"ds_read_b64_tr_b16 v[{V1}:{V1+1}], v{vV1} offset:{2*QKV_K+ob}",
             f"ds_read_b64_tr_b16 v[{V1+2}:{V1+3}], v{vV1} offset:{2*QKV_K+ob+1024}"]
        Lc = [f"{MF} v[{SAa}:{SAa+3}], v[{KA}:{KA+3}], v[{Q}:{Q+3}], 0",
              f"{MF} v[{SBb}:{SBb+3}], v[{KB}:{KB+3}], v[{Q}:{Q+3}], 0"]
        ma = MA0 if bb == 0 else MA
        for rr in range(4): Lc.append(f"v_cndmask_b32 v{SAa+rr}, v{vNEG}, v{SAa+rr}, s[{ma+2*rr}:{ma+2*rr+1}]")
        for rr in range(4): Lc.append(f"v_cndmask_b32 v{SBb+rr}, v{vNEG}, v{SBb+rr}, s[{MB+2*rr}:{MB+2*rr+1}]")
        X = [SAa + j for j in range(8)]
        Lc += [f"v_max3_f32 v{M}, v{X[0]}, v{X[1]}, v{X[2]}", f"v_max3_f32 v{T}, v{X[3]}, v{X[4]}, v{X[5]}",
              f"v_max3_f32 v{M}, v{M}, v{X[6]}, v{X[7]}", f"v_max_f32 v{M}, v{M}, v{T}"]
        Lc += [f"v_mov_b32 v{T}, v{M}", f"v_permlane16_swap_b32 v{M}, v{T}", f"v_max_f32 v{M}, v{M}, v{T}",
              f"v_mov_b32 v{T}, v{M}", f"v_permlane32_swap_b32 v{M}, v{T}", f"v_max_f32 v{M}, v{M}, v{T}"]
        Lc.append(f"v_mul_f32 v{M}, s71, v{M}")
        for x in X: Lc.append(f"v_fma_f32 v{x}, v{x}, s71, -v{M}")
        for x in X: Lc.append(f"v_exp_f32 v{x}, v{x}")
        Lc += [f"v_add_f32 v{S}, v{X[0]}, v{X[1]}", f"v_add_f32 v{T}, v{X[2]}, v{X[3]}", f"v_add_f32 v{M}, v{X[4]}, v{X[5]}",
              f"v_add_f32 v{S}, v{S}, v{T}", f"v_add_f32 v{T}, v{X[6]}, v{X[7]}", f"v_add_f32 v{M}, v{M}, v{T}", f"v_add_f32 v{S}, v{S}, v{M}"]
        Lc += [f"v_mov_b32 v{T}, v{S}", f"v_permlane16_swap_b32 v{S}, v{T}", f"v_add_f32 v{S}, v{S}, v{T}",
              f"v_mov_b32 v{T}, v{S}", f"v_permlane32_swap_b32 v{S}, v{T}", f"v_add_f32 v{S}, v{S}, v{T}"]
        Lc.append(f"v_rcp_f32 v{S}, v{S}")
        for x in X: Lc.append(f"v_mul_f32 v{x}, v{x}, v{S}")
        for j in range(4): Lc.append(f"v_cvt_pk_bf16_f32 v{P+j}, v{X[2*j]}, v{X[2*j+1]}")
        Lc += [f"{MF} v[{O0}:{O0+3}], v[{V0}:{V0+3}], v[{P}:{P+3}], 0",
               f"{MF} v[{O1}:{O1+3}], v[{V1}:{V1+3}], v[{P}:{P+3}], 0"]
        D = KA
        Lc += [f"v_cvt_pk_bf16_f32 v{D}, v{O0}, v{O0+1}", f"v_cvt_pk_bf16_f32 v{D+1}, v{O0+2}, v{O0+3}",
              f"v_cvt_pk_bf16_f32 v{D+2}, v{O1}, v{O1+1}", f"v_cvt_pk_bf16_f32 v{D+3}, v{O1+2}, v{O1+3}",
              f"v_permlane16_swap_b32 v{D}, v{D+2}", f"v_permlane16_swap_b32 v{D+1}, v{D+3}",
              f"buffer_store_dwordx4 v[{D}:{D+3}], v{vO}, s[{SA}:{SA+3}], s{48+bb} offen offset:{par*16}"]
        return Lr, Lc
    for bb in range(4): a(f"s_add_u32 s{48+bb}, s65, {2*bb*MFS}")
    for half in range(2):
        U = [unit(2 * half + (u >> 1), u & 1, 48 * u) for u in range(4)]
        for Lr, _ in U:
            for x in Lr: k(x)
        for xs in zip(*[Lc for _, Lc in U]):
            for x in xs: k(x)
    stamp(k, cfg, g.vP, 12)
    for i in range(8):
        F = [(acc(6 + f, i), acc(8 + f, i)) for f in range(2)]
        for x in glu_block(k, F, 24 * (i % 4), 24 * (i % 4) + 16, st_full(i, 63)): k(x)

G2_NS = 6
G2_WR = G2_NS * 16384
G2_LDS = G2_WR + G2_NS * 8192

def gen_g2(a, cfg):
    NS = G2_NS; NPH = 36
    NPRE = cfg.get("g2_npre", 2)
    k = K(a)
    header(a, KN)
    XB = [128, 160]; WB = [192, 208]
    vDX, vDW, vX0, vX1, vW, vLane, vTab, vP = 224, 228, 230, 231, 232, 236, 237, 238
    T0, T1, T2, T3 = 240, 241, 242, 243
    sS, sTM, sTN, sW, sTile, sMH, sNH = 12, 13, 14, 15, 3, 16, 17
    SX, SW, SP, SF, SXR, SO = 20, 24, 28, 32, 36, 40
    sCX, sCW, sOX, sOW, sMXb, sMWb, sCnt = 44, 45, 48, 49, 50, 51, 52
    a("s_cmp_ge_u32 s2, 256"); a("s_cbranch_scc1 L_g2_end")
    if cfg.get("prof"): a(f"v_mov_b32 v{vP}, 0")
    stamp(k, cfg, vP, 0)
    a("s_load_dwordx2 s[4:5], s[0:1], 16")
    a("s_load_dwordx4 s[8:11], s[0:1], 48")
    a("s_load_dwordx2 s[6:7], s[0:1], 72")
    a("s_load_dwordx2 s[46:47], s[0:1], 0")
    a(f"v_and_b32 v{vLane}, 63, v0")
    a(f"v_lshrrev_b32 v{T0}, 6, v0")
    a(f"v_readfirstlane_b32 s{sW}, v{T0}")
    wg_decode(k, sTM, sS, sTN, 60)
    a(f"s_lshl_b32 s{sTile}, s{sTM}, 3"); a(f"s_add_u32 s{sTile}, s{sTile}, s{sTN}")
    a(f"s_and_b32 s{sMH}, s{sW}, 1"); a(f"s_lshr_b32 s{sNH}, s{sW}, 1")
    a(f"s_lshr_b32 s60, s{sTN}, 1"); a("s_mul_i32 s60, s60, 9"); a(f"s_and_b32 s61, s{sTN}, 1"); a("s_mul_i32 s61, s61, 5")
    a(f"s_add_u32 s{sCX}, s60, s61"); a(f"s_mov_b32 s{sCW}, s{sCX}")
    a(f"s_lshl_b32 s60, s{sTM}, 2"); a(f"s_add_u32 s60, s60, s{sW}"); a(f"s_mul_i32 s60, s60, {4*MFS}")
    a(f"s_mul_i32 s61, s{sS}, {36*1024}"); a("s_add_u32 s60, s60, s61")
    a(f"v_lshlrev_b32 v{T3}, 4, v{vLane}")
    a(f"v_add_u32 v{vDX}, s60, v{T3}")
    for i in range(1, 4): a(f"v_add_u32 v{vDX+i}, {i*MFS}, v{vDX}")
    a(f"s_lshl_b32 s{sMXb}, s{sW}, 12")
    a(f"s_lshl_b32 s{sMWb}, s{sW}, 11"); a(f"s_add_u32 s{sMWb}, s{sMWb}, {G2_WR}")
    a(f"v_mul_u32_u24 v{T0}, 7282, v{vLane}"); a(f"v_lshrrev_b32 v{T0}, 16, v{T0}")
    a(f"v_mul_u32_u24 v{T1}, 9, v{T0}"); a(f"v_sub_u32 v{T1}, v{vLane}, v{T1}")
    a(f"s_lshl_b32 s60, s{sS}, 2"); a(f"v_add_u32 v{T0}, s60, v{T0}")
    a(f"v_mul_u32_u24 v{vTab}, 224, v{T0}"); a(f"v_lshl_add_u32 v{vTab}, v{T1}, 5, v{vTab}"); a(f"v_subrev_u32 v{vTab}, 32, v{vTab}")
    a(f"v_lshlrev_b32 v{vTab}, 11, v{vTab}")
    a(f"v_lshrrev_b32 v{T2}, 3, v{T1}"); a(f"v_lshl_add_u32 v{T2}, v{T0}, 1, v{T2}")
    a(f"v_lshlrev_b32 v{T2}, 16, v{T2}"); a(f"v_or_b32 v{T2}, 1, v{T2}")
    a(f"v_and_b32 v{T1}, 7, v{T1}"); a(f"v_cmp_eq_u32 vcc, 0, v{T1}")
    a(f"v_cndmask_b32 v{vTab}, v{vTab}, v{T2}, vcc")
    for e in range(2):
        a(f"s_lshl_b32 s60, s{sW}, 3"); a(f"s_add_u32 s60, s60, {4*e}")
        a(f"v_lshrrev_b32 v{T0}, 4, v{vLane}"); a(f"v_add_u32 v{T0}, s60, v{T0}")
        a(f"v_lshrrev_b32 v{T1}, 1, v{vLane}"); a(f"v_xor_b32 v{T1}, v{T1}, v{T0}"); a(f"v_and_b32 v{T1}, 7, v{T1}")
        a(f"v_and_b32 v{T2}, 1, v{vLane}"); a(f"v_lshlrev_b32 v{T2}, 4, v{T2}"); a(f"v_lshl_add_u32 v{vDW+e}, v{T1}, 5, v{T2}")
        a(f"v_bfe_u32 v{T1}, v{T0}, 2, 2"); a(f"v_lshlrev_b32 v{T1}, 3, v{T1}")
        a(f"v_lshrrev_b32 v{T2}, 4, v{T0}"); a(f"v_lshl_add_u32 v{T1}, v{T2}, 2, v{T1}")
        a(f"v_and_b32 v{T2}, 3, v{T0}"); a(f"v_add_u32 v{T1}, v{T1}, v{T2}")
        a(f"v_lshl_add_u32 v{vDW+e}, v{T1}, 11, v{vDW+e}")
        a(f"s_lshl_b32 s60, s{sTN}, 8"); a(f"v_add_u32 v{vDW+e}, s60, v{vDW+e}")
    a("s_waitcnt lgkmcnt(0)")
    srd(k, SX, 6, 7, ACT_BYTES, ACT_OFF)
    a(f"s_mov_b32 s{SW+2}, {3584*2048}"); a(f"s_mov_b32 s{SW+3}, 0x20000")
    def xdma(q):
        L = [(f"s_lshl_b32 s{sOX}, s{sCX}, 10", None)]
        for i in range(4):
            L += [(f"s_add_u32 m0, s{sMXb}, {q*16384 + i*1024}", None),
                  (f"buffer_load_dwordx4 v{vDX+i}, s[{SX}:{SX+3}], s{sOX} offen lds", q)]
        L += [(f"s_add_u32 s{sCX}, s{sCX}, 1\ns_cmp_eq_u32 s{sCX}, 36\ns_cselect_b32 s{sCX}, 0, s{sCX}", None)]
        return L
    def wdma(q):
        L = [(f"v_readlane_b32 s{sOW}, v{vTab}, s{sCW}", None),
             (f"s_add_u32 s{sCW}, s{sCW}, 1\ns_cmp_eq_u32 s{sCW}, 36\ns_cselect_b32 s{sCW}, 0, s{sCW}", None),
             (f"s_bitcmp1_b32 s{sOW}, 0\ns_cselect_b32 s{SW}, s4, s8\ns_cselect_b32 s{SW+1}, s5, s9", None),
             (f"s_and_b32 s{sOW}, s{sOW}, 0xfffffffe", None)]
        for e in range(2):
            L += [(f"s_add_u32 m0, s{sMWb}, {q*8192 + e*1024}", None),
                  (f"buffer_load_dwordx4 v{vDW+e}, s[{SW}:{SW+3}], s{sOW} offen lds", q)]
        return L
    for q in range(NS):
        for t, tag in xdma(q) + wdma(q): k(t, tag)
    srd(k, SP, 6, 7, PART_BYTES, PART_OFF)
    srd(k, SF, 6, 7, FLAG_BYTES, FLAG_OFF)
    srd(k, SXR, 46, 47, 2048 * 2048)
    srd(k, SO, 10, 11, 2048 * 2048)
    a(f"s_lshl_b32 s60, s{sMH}, 13"); a(f"v_add_u32 v{vX0}, s60, v{T3}"); a(f"v_add_u32 v{vX1}, {3*16384}, v{vX0}")
    a(f"v_lshrrev_b32 v{T0}, 4, v{vLane}"); a(f"v_bfe_u32 v{T1}, v{vLane}, 2, 2"); a(f"v_lshl_add_u32 v{T1}, v{T0}, 2, v{T1}")
    a(f"v_and_b32 v{T2}, 3, v{vLane}"); a(f"v_lshlrev_b32 v{T2}, 3, v{T2}"); a(f"v_lshl_add_u32 v{T2}, v{T1}, 8, v{T2}")
    a(f"v_add_u32 v{T2}, {G2_WR}, v{T2}")
    a(f"v_and_b32 v{T1}, 7, v{T1}")
    for t in range(4):
        a(f"s_lshl_b32 s60, s{sNH}, 2"); a(f"s_add_u32 s60, s60, {t}")
        a(f"v_xor_b32 v{T0}, s60, v{T1}"); a(f"v_lshl_add_u32 v{vW+t}, v{T0}, 5, v{T2}")
    for r in range(128): a(f"v_mov_b32 v{r}, 0")
    def xread(q, par):
        vx = vX0 if q < 3 else vX1
        return [(f"ds_read_b128 {R('v', XB[par]+4*i)}, v{vx} offset:{(q%3)*16384+i*1024}", None) for i in range(8)]
    def wread(q, par):
        L = []
        for t in range(4):
            d = WB[par] + 4 * t
            L += [(f"ds_read_b64_tr_b16 v[{d}:{d+1}], v{vW+t} offset:{q*8192}", None),
                  (f"ds_read_b64_tr_b16 v[{d+2}:{d+3}], v{vW+t} offset:{q*8192+4096}", None)]
        return L
    def phase(k, q, do_dma, last):
        par = q & 1
        M = []
        for t in range(4):
            for i in range(8):
                c = (i * 4 + t) * 4
                M.append(f"{MF} {R('v', c)}, {R('v', WB[par]+4*t)}, {R('v', XB[par]+4*i)}, {R('v', c)}")
        for m in M[:NPRE]: k(m)
        if last:
            for m in M[NPRE:]: k(m)
            return
        k.wait_vm((q + 1) % NS, lgkm0=True); k.raw("s_barrier")
        n = len(M) - NPRE
        nq = (q + 1) % NS
        rd = wread(nq, par ^ 1)[:2] + xread(nq, par ^ 1) + wread(nq, par ^ 1)[2:]
        F = spread(rd, 0, n - 8, "x")
        if do_dma: F += spread(xdma(q) + wdma(q), 0, n - 1, "d")
        for t, tag in schedule(M[NPRE:], F): k(t, tag)
    stamp(k, cfg, vP, 1)
    k.wait_vm(0); a("s_barrier")
    stamp(k, cfg, vP, 2)
    for t, _ in wread(0, 0)[:2] + xread(0, 0) + wread(0, 0)[2:]: k(t)
    a(f"s_mov_b32 s{sCnt}, 0")
    def body(k):
        k.label("L_g2_loop")
        for q in range(NS): phase(k, q, True, False)
        if cfg.get("prof"):
            k.raw(f"s_add_u32 s100, s{sCnt}, 3"); stamp(k, cfg, vP, "s100")
        k.raw(f"s_add_u32 s{sCnt}, s{sCnt}, 1"); k.raw(f"s_cmp_lt_u32 s{sCnt}, {NPH//NS - 1}"); k.raw("s_cbranch_scc1 L_g2_loop")
    k.loop(body)
    for q in range(NS): phase(k, q, False, q == NS - 1)
    stamp(k, cfg, vP, 10)
    vL16 = T3
    a(f"s_lshl_b32 s60, s{sTile}, 4"); a(f"s_add_u32 s60, s60, s{sS}"); a("s_lshl_b32 s60, s60, 2"); a(f"s_add_u32 s60, s60, s{sW}"); a("s_lshl_b32 s60, s60, 12")
    for j in range(4):
        a(f"s_cmp_eq_u32 s{sS}, {j}"); a(f"s_cbranch_scc1 L_g2_skip{j}")
        a(f"s_add_u32 s61, s60, {j*4*4*4096}")
        for n in range(4):
            c = j * 32 + n * 8; P = 128 + (j * 4 + n) * 4
            for r in range(4): a(f"v_cvt_pk_bf16_f32 v{P+r}, v{c+2*r}, v{c+2*r+1}")
            a(f"buffer_store_dwordx4 v[{P}:{P+3}], v{vL16}, s[{SP}:{SP+3}], s61 offen offset:{n*1024} sc1")
        a.label(f"L_g2_skip{j}")
    vXa, vOut = 244, 245
    a(f"v_and_b32 v{T0}, 15, v{vLane}"); a(f"v_lshlrev_b32 v{T0}, 11, v{T0}")
    a(f"v_lshrrev_b32 v{T1}, 4, v{vLane}")
    a(f"v_lshl_add_u32 v{vXa}, v{T1}, 3, v{T0}")
    a(f"v_and_b32 v{T2}, 1, v{T1}"); a(f"v_lshl_add_u32 v{vOut}, v{T2}, 5, v{T0}")
    a(f"v_lshrrev_b32 v{T2}, 1, v{T1}"); a(f"v_lshl_add_u32 v{vOut}, v{T2}, 4, v{vOut}")
    a(f"s_lshl_b32 s62, s{sTM}, 1"); a(f"s_add_u32 s62, s62, s{sMH}"); a("s_lshl_b32 s62, s62, 2"); a(f"s_add_u32 s62, s62, s{sS}"); a("s_lshl_b32 s62, s62, 16")
    a(f"s_lshl_b32 s63, s{sTN}, 1"); a(f"s_add_u32 s63, s63, s{sNH}"); a("s_lshl_b32 s63, s63, 7"); a("s_add_u32 s62, s62, s63")
    a("s_add_u32 s63, s62, 32768")
    XRr = 192
    a("s_waitcnt vmcnt(0)")
    stamp(k, cfg, vP, 11)
    a(f"s_lshl_b32 s55, s{sTile}, 2"); a(f"s_add_u32 s55, s55, s{sW}"); a("s_lshl_b32 s55, s55, 6")
    a(f"s_lshl_b32 s56, s{sS}, 2"); a("s_add_u32 s56, s56, s55")
    a(f"v_mov_b32 v{T0}, 1"); a(f"v_mov_b32 v{T1}, 0")
    a("s_mov_b64 exec, 1")
    a(f"buffer_store_dword v{T0}, v{T1}, s[{SF}:{SF+3}], s56 offen sc1")
    a("s_mov_b64 exec, -1")
    for ii in range(2):
        for t in range(4):
            r = XRr + (ii * 4 + t) * 2
            a(f"buffer_load_dwordx2 v[{r}:{r+1}], v{vXa}, s[{SXR}:{SXR+3}], s{62+ii} offen offset:{t*32}")
    a("s_mov_b32 s57, 0")
    a.label("L_g2_poll")
    a(f"buffer_load_dwordx4 v[248:251], v{T1}, s[{SF}:{SF+3}], s55 offen sc1")
    a("s_waitcnt vmcnt(0)")
    a("v_and_b32 v248, v248, v249"); a("v_and_b32 v250, v250, v251"); a("v_and_b32 v248, v248, v250")
    a("v_readfirstlane_b32 s58, v248")
    a("s_add_u32 s57, s57, 1")
    a("s_cmp_ge_u32 s57, 100000"); a("s_cbranch_scc1 L_g2_polldone")
    a("s_cmp_eq_u32 s58, 1"); a("s_cbranch_scc0 L_g2_poll")
    a.label("L_g2_polldone")
    stamp(k, cfg, vP, 12)
    a(f"s_lshl_b32 s60, s{sTile}, 2"); a(f"s_add_u32 s60, s60, s{sS}"); a("s_lshl_b32 s60, s60, 4"); a(f"s_add_u32 s60, s60, s{sW}"); a("s_lshl_b32 s60, s60, 12")
    for s in range(4):
        a(f"s_cmp_lg_u32 s{sS}, {s}"); a(f"s_cbranch_scc1 L_g2_fin{s}_skip")
        k.reset()
        Rr = s * 32
        others = [x for x in range(4) if x != s]
        for m, src in enumerate(others):
            a(f"s_add_u32 s61, s60, {src*4*4096}")
            for n in range(4):
                B = 128 + (m * 4 + n) * 4
                k(f"buffer_load_dwordx4 v[{B}:{B+3}], v{vL16}, s[{SP}:{SP+3}], s61 offen offset:{n*1024} sc1")
        def addp(c, p, n):
            t0, t1 = 208 + 2 * (n % 8), 209 + 2 * (n % 8)
            k(f"v_lshlrev_b32 v{t0}, 16, v{p}"); k(f"v_and_b32 v{t1}, 0xffff0000, v{p}")
            k(f"v_add_f32 v{c}, v{c}, v{t0}"); k(f"v_add_f32 v{c+1}, v{c+1}, v{t1}")
        for r in range(16): addp(Rr + 2 * r, XRr + r, r)
        for m in range(3):
            for r in range(16): addp(Rr + 2 * r, 128 + m * 16 + r, r)
        for n in range(4):
            c = Rr + n * 8; P = 176 + 4 * n
            for r in range(4): k(f"v_cvt_pk_bf16_f32 v{P+r}, v{c+2*r}, v{c+2*r+1}")
            k(f"v_permlane16_swap_b32 v{P}, v{P+2}"); k(f"v_permlane16_swap_b32 v{P+1}, v{P+3}")
            k(f"buffer_store_dwordx4 v[{P}:{P+3}], v{vOut}, s[{SO}:{SO+3}], s{62 + n//2} offen offset:{64*(n%2)}")
        a("s_branch L_g2_done")
        a.label(f"L_g2_fin{s}_skip")
    a.label("L_g2_done")
    stamp(k, cfg, vP, 13)
    prof_store(k, cfg, vP, T0, sW, 1)
    a.label("L_g2_end")
    a("s_endpgm")

def build(cfg, launches=("ln", "g1", "g2")):
    a = Asm()
    gen_ln(a); gen_g1(a, cfg); gen_g2(a, cfg)
    body = a.finalize()
    hdr = []
    L = {"ln": "; @launch kernel=ln_kernel grid=(256,1,1) block=(256,1,1) lds=256",
         "g1": f"; @launch kernel=g1_kernel grid=(256,1,1) block=(256,1,1) lds={G1_LDS}",
         "g2": f"; @launch kernel={KN} grid=(256,1,1) block=(256,1,1) lds={G2_LDS}"}
    for l in launches: hdr.append(L[l])
    hdr += ['.amdgcn_target "amdgcn-amd-amdhsa--gfx950"', ".text"]
    tail = ['.section .rodata,"a"', ".p2align 6", descriptor("ln_kernel", 104, 32), ".p2align 6", descriptor("g1_kernel", 512, 102, 256),
            ".p2align 6", descriptor(KN, 256, 102)]
    return "\n".join(hdr) + "\n" + body + "\n" + "\n".join(tail) + "\n"

if __name__ == "__main__":
    out = sys.argv[1]
    cfg = {}
    launches = ("ln", "g1", "g2")
    for kv in sys.argv[2:]:
        kk, v = kv.split("=")
        if kk == "launches": launches = v.split(",")
        else: cfg[kk] = int(v)
    open(out, "w").write(build(cfg, launches))
    print("wrote", out)
```

```python
import struct
from asmlib import Asm, Ins

def f2u(x):
    return struct.unpack("<I", struct.pack("<f", x))[0]

class K:
    def __init__(self, a):
        self.a = a
        self.lq = []
        self.vq = []
        self.dry = False
        self.idx = 0
        self.rec = None
        self.forced = None
    def reset(self):
        self.lq = []; self.vq = []
    def raw(self, t):
        if not self.dry: self.a(t)
    def label(self, l):
        if not self.dry: self.a.label(l)
    def __call__(self, text, tag=None):
        for t in text.split("\n"):
            t = t.strip()
            if t: self._one(t, tag)
    def _wait(self, vm, lg):
        i = self.idx; self.idx += 1
        if self.rec is not None:
            r = self.rec.setdefault(i, [None, None])
            if vm is not None: r[0] = vm if r[0] is None else min(r[0], vm)
            if lg is not None: r[1] = lg if r[1] is None else min(r[1], lg)
        if self.forced is not None:
            f = self.forced.get(i, [None, None])
            if vm is not None: assert f[0] is not None and f[0] <= vm, "forced vm wait too weak"
            if lg is not None: assert f[1] is not None and f[1] <= lg, "forced lgkm wait too weak"
            vm, lg = f
        w = []
        if vm is not None:
            vm = min(vm, 63); w.append(f"vmcnt({vm})")
            if len(self.vq) > vm: self.vq = self.vq[len(self.vq) - vm:] if vm else []
        if lg is not None:
            lg = min(lg, 15); w.append(f"lgkmcnt({lg})")
            if len(self.lq) > lg: self.lq = self.lq[len(self.lq) - lg:] if lg else []
        if w and not self.dry: self.a("s_waitcnt " + " ".join(w))
    def _one(self, t, tag):
        I = Ins(t)
        if I.op == "s_waitcnt":
            raise ValueError("use wait helpers")
        use = I.src | I.dst
        li = max((i for i, d in enumerate(self.lq) if d & use), default=None)
        vi = max((i for i, (_, d) in enumerate(self.vq) if d & use), default=None)
        self._wait(None if vi is None else len(self.vq) - 1 - vi, None if li is None else len(self.lq) - 1 - li)
        if not self.dry: self.a(t)
        if I.kind == "ds": self.lq.append(set(I.dst))
        elif I.kind == "vmem": self.vq.append((tag, set(I.dst)))
    def wait_lgkm0(self, force=False):
        self._wait(None, 0 if (self.lq or force) else None)
    def wait_vm0(self, force=False):
        self._wait(0 if (self.vq or force) else None, None)
    def wait_vm(self, tag, lgkm0=False):
        vi = max((i for i, (tg, _) in enumerate(self.vq) if tg == tag or (isinstance(tg, frozenset) and tag in tg)), default=None)
        self._wait(None if vi is None else len(self.vq) - 1 - vi, 0 if (lgkm0 and self.lq) else None)
    def smem_wait(self):
        self._wait(None, 0)
    def snap(self):
        return ([set(x) for x in self.lq], [(t, set(d)) for t, d in self.vq])
    def restore(self, st):
        self.lq = [set(x) for x in st[0]]; self.vq = [(t, set(d)) for t, d in st[1]]
    def merge(self, states):
        nl = max(len(s[0]) for s in states); nv = max(len(s[1]) for s in states)
        lq = [set() for _ in range(nl)]; vq = [[set(), set()] for _ in range(nv)]
        for l, v in states:
            for d, x in enumerate(reversed(l)): lq[nl - 1 - d] |= x
            for d, (t, x) in enumerate(reversed(v)):
                e = vq[nv - 1 - d]
                e[0] |= (set(t) if isinstance(t, frozenset) else {t}); e[1] |= x
        self.lq = lq; self.vq = [(frozenset(t), x) for t, x in vq]
    def loop(self, body, passes=3):
        assert self.rec is None and self.forced is None and not self.dry
        st = ([set(x) for x in self.lq], list(self.vq))
        self.dry = True; self.rec = {}
        for p in range(passes):
            self.idx = 0; body(self)
        merged = self.rec; self.rec = None
        self.lq, self.vq = [set(x) for x in st[0]], list(st[1])
        self.forced = merged
        self.dry = False; self.idx = 0; body(self)
        self.dry = True
        for p in range(passes):
            self.idx = 0; body(self)
        self.dry = False; self.forced = None

def srd(k, d, lo, hi, size, off=0):
    if off:
        k.raw(f"s_add_u32 s{d}, s{lo}, {off}")
        k.raw(f"s_addc_u32 s{d+1}, s{hi}, 0")
    else:
        k.raw(f"s_mov_b32 s{d}, s{lo}")
        k.raw(f"s_mov_b32 s{d+1}, s{hi}")
    k.raw(f"s_mov_b32 s{d+2}, {size}")
    k.raw(f"s_mov_b32 s{d+3}, 0x20000")

def header(a, name):
    a.raw(f".globl {name}")
    a.raw(".p2align 8")
    a.raw(f".type {name},@function")
    a.label(name)

def descriptor(name, vgpr, sgpr=102, accum=None):
    return "\n".join([
        f".amdhsa_kernel {name}",
        f"  .amdhsa_next_free_vgpr {vgpr}",
        f"  .amdhsa_next_free_sgpr {sgpr}",
        f"  .amdhsa_accum_offset {accum if accum else (vgpr + 3) // 4 * 4}",
        "  .amdhsa_group_segment_fixed_size 0",
        "  .amdhsa_kernarg_size 80",
        "  .amdhsa_user_sgpr_count 2",
        "  .amdhsa_user_sgpr_kernarg_segment_ptr 1",
        "  .amdhsa_system_sgpr_workgroup_id_x 1",
        "  .amdhsa_float_denorm_mode_32 3",
        ".end_amdhsa_kernel"])

def R(kind, b, n=4):
    return f"{kind}[{b}:{b+n-1}]" if n > 1 else f"{kind}{b}"

def spread(items, lo, hi, sid, earliest=None):
    n = len(items); out = []
    for k, (t, tag) in enumerate(items):
        pos = lo + (hi - lo) * k / max(n, 1)
        e = earliest[k] if earliest else 0
        out.append((max(pos, e), e, t, tag, sid))
    return out

def schedule(mf, fillers, cap=1):
    pend = sorted(fillers, key=lambda f: f[0])
    out = []
    for i, m in enumerate(mf):
        out.append((m, None))
        cnt = 0; j = 0; blocked = set()
        left = len(mf) - i
        c = max(cap, -(-len(pend) // left))
        while j < len(pend) and cnt < c:
            pos, e, t, tag, sid = pend[j]
            if pos > i and len(pend) <= left - 1: break
            if e <= i and sid not in blocked:
                out.append((t, tag)); pend.pop(j); cnt += 1; blocked.add(sid)
            else:
                blocked.add(sid); j += 1
    for pos, e, t, tag, sid in pend: out.append((t, tag))
    return out
```

```python
import sys, os, math
sys.path.insert(0, os.path.dirname(__file__))
from asmlib import Asm
from fw import *

KN = "parallel_sum__sliding_local_dilated__glu_gated_glu__prompt_kernel"
XN_OFF = 0
ACT_OFF = 0x400000
MFS = 144 * 1024
ACT_BYTES = 128 * MFS
PART_OFF = 0x2000000
PART_BYTES = 64 * 4 * 4 * 4 * 4096
FLAG_OFF = 0x6000000
FLAG_BYTES = 64 * 4 * 64
PROF_OFF = 0x7000000
LOG2E = 1.4426950408889634
MF = "v_mfma_f32_16x16x32_bf16"

def stamp(k, cfg, vp, idx, st=96):
    if not cfg.get("prof"): return
    k.raw(f"s_memrealtime s[{st}:{st+1}]"); k.raw(f"s_memtime s[{st+2}:{st+3}]")
    k.smem_wait()
    if isinstance(idx, int):
        k.raw(f"v_writelane_b32 v{vp}, s{st}, {idx}"); k.raw(f"v_writelane_b32 v{vp}, s{st+2}, {32+idx}")
    else:
        k.raw(f"s_lshl_b64 exec, 1, {idx}"); k.raw(f"v_mov_b32 v{vp}, s{st}"); k.raw("s_lshl_b64 exec, exec, 32")
        k.raw(f"v_mov_b32 v{vp}, s{st+2}"); k.raw("s_mov_b64 exec, -1")

def prof_store(k, cfg, vp, vt, sW, kidx, ws=(6, 7), st=96):
    if not cfg.get("prof"): return
    k.wait_vm0(force=True)
    stamp(k, cfg, vp, 31, st)
    srd(k, st, ws[0], ws[1], 0x100000, PROF_OFF + kidx * 0x100000)
    k.raw(f"v_mbcnt_lo_u32_b32 v{vt}, -1, 0"); k.raw(f"v_mbcnt_hi_u32_b32 v{vt}, -1, v{vt}"); k.raw(f"v_lshlrev_b32 v{vt}, 2, v{vt}")
    k.raw(f"s_lshl_b32 s{st+4}, s2, 3"); k.raw(f"s_add_u32 s{st+4}, s{st+4}, s{sW}"); k.raw(f"s_lshl_b32 s{st+4}, s{st+4}, 8")
    k.raw(f"buffer_store_dword v{vp}, v{vt}, s[{st}:{st+3}], s{st+4} offen")

def xlane_reduce(a, op, v, t):
    a(f"v_mov_b32 v{t}, v{v}")
    a(f"v_permlane16_swap_b32 v{v}, v{t}")
    a(f"{op} v{v}, v{v}, v{t}")
    a(f"v_mov_b32 v{t}, v{v}")
    a(f"v_permlane32_swap_b32 v{v}, v{t}")
    a(f"{op} v{v}, v{v}, v{t}")

def wg_decode(k, sMT, sS, sJ, t0):
    k.raw(f"s_and_b32 s{t0}, s2, 7"); k.raw(f"s_lshr_b32 s{sS}, s{t0}, 1")
    k.raw(f"s_and_b32 s{t0}, s{t0}, 1"); k.raw(f"s_lshl_b32 s{t0}, s{t0}, 2")
    k.raw(f"s_bfe_u32 s{sMT}, s2, {3 | (2 << 16)}"); k.raw(f"s_add_u32 s{sMT}, s{sMT}, s{t0}")
    k.raw(f"s_lshr_b32 s{sJ}, s2, 5")

def gen_ln(a, nflag=4, lnb=0):
    k = K(a)
    header(a, "ln_kernel")
    a("s_cmp_ge_u32 s2, 256"); a("s_cbranch_scc1 L_ln_end")
    a("s_load_dwordx2 s[4:5], s[0:1], 0")
    a("s_load_dwordx2 s[6:7], s[0:1], 72")
    if lnb:
        a("s_load_dwordx2 s[24:25], s[0:1], 8")
        a("s_load_dwordx4 s[28:31], s[0:1], 32")
    a("v_and_b32 v1, 63, v0")
    a("v_lshrrev_b32 v2, 6, v0")
    a("v_and_b32 v3, 7, v1")
    a("v_lshrrev_b32 v4, 3, v1")
    a("v_lshlrev_b32 v5, 11, v3")
    a("v_lshl_add_u32 v5, v4, 4, v5")
    a("v_lshl_add_u32 v5, v2, 9, v5")
    a("s_lshl_b32 s3, s2, 14")
    a("s_waitcnt lgkmcnt(0)")
    srd(k, 8, 4, 5, 2048 * 2048)
    for i in range(4):
        a(f"buffer_load_dwordx4 v[{8+4*i}:{11+4*i}], v5, s[8:11], s3 offen offset:{128*i}")
    if lnb:
        a("v_readfirstlane_b32 s23, v2")
        a("s_cmp_eq_u32 s23, 1"); a("s_cselect_b32 s24, s28, s24"); a("s_cselect_b32 s25, s29, s25")
        a("s_cmp_ge_u32 s23, 2"); a("s_cselect_b32 s24, s30, s24"); a("s_cselect_b32 s25, s31, s25")
        a("s_cmp_eq_u32 s23, 0"); a("s_cselect_b32 s28, 3072, 3584"); a("s_cselect_b32 s29, 23, 27")
        a("s_lshl_b32 s26, s28, 11"); a("s_mov_b32 s27, 0x20000")
        a("s_cmp_eq_u32 s23, 3"); a("s_cselect_b32 s26, 0, s26")
        a("v_and_b32 v98, 31, v1"); a("v_min_u32 v98, s29, v98"); a("v_lshlrev_b32 v98, 7, v98")
        a("v_lshrrev_b32 v99, 5, v1"); a("v_lshlrev_b32 v99, 8, v99"); a("v_add_u32 v99, s2, v99")
        a("v_mad_u32_u24 v98, v99, s28, v98")
        a("s_lshl_b32 s28, s28, 9")
        for b in range(0, lnb, 2):
            if b + 1 == lnb: a("s_mov_b64 exec, 0xffffffff")
            a(f"buffer_load_dword v{100+b//2}, v98, s[24:27], {'0' if b == 0 else 's28'} offen")
            if b + 1 == lnb: a("s_mov_b64 exec, -1")
    srd(k, 12, 6, 7, 2048 * 2048, XN_OFF)
    srd(k, 16, 6, 7, FLAG_BYTES, FLAG_OFF)
    a(f"s_cmp_ge_u32 s2, {nflag}"); a("s_cbranch_scc1 L_ln_noflag")
    for r in range(60, 64): a(f"v_mov_b32 v{r}, 0")
    a("v_lshlrev_b32 v6, 4, v0"); a("s_lshl_b32 s20, s2, 12")
    a("buffer_store_dwordx4 v[60:63], v6, s[16:19], s20 offen")
    a.label("L_ln_noflag")
    a("v_lshlrev_b32 v6, 13, v2")
    a("v_lshl_add_u32 v6, v4, 8, v6")
    a("v_lshl_add_u32 v6, v3, 4, v6")
    a("s_lshr_b32 s20, s2, 1"); a("s_lshl_b32 s20, s20, 15")
    a("s_and_b32 s21, s2, 1"); a("s_lshl_b32 s21, s21, 7")
    a("s_add_u32 s20, s20, s21")
    a("s_add_u32 s22, s20, 4096")
    a("v_lshlrev_b32 v7, 4, v3")
    a("v_lshl_add_u32 v64, v2, 2, v7")
    a(f"s_waitcnt vmcnt({(lnb + 1) // 2})")
    for i in range(16):
        a(f"v_lshlrev_b32 v{24+2*i}, 16, v{8+i}")
        a(f"v_and_b32 v{25+2*i}, 0xffff0000, v{8+i}")
    def reduce32(src_fn, dst, ldsoff):
        for i in range(16): a(f"v_add_f32 v{8+i}, v{src_fn(2*i)}, v{src_fn(2*i+1)}")
        n = 16
        while n > 1:
            for i in range(n // 2): a(f"v_add_f32 v{8+i}, v{8+i}, v{8+i+n//2}")
            n //= 2
        a(f"v_add_f32_dpp v{dst}, v8, v8 row_ror:8 row_mask:0xf bank_mask:0xf")
        xlane_reduce(a, "v_add_f32", dst, 9)
        a(f"ds_write_b32 v64, v{dst} offset:{ldsoff}")
        a("s_waitcnt lgkmcnt(0)")
        a("s_barrier")
        a(f"ds_read_b128 v[8:11], v7 offset:{ldsoff}")
        a("s_waitcnt lgkmcnt(0)")
        a("v_add_f32 v8, v8, v9"); a("v_add_f32 v10, v10, v11"); a(f"v_add_f32 v{dst}, v8, v10")
        a(f"v_mul_f32 v{dst}, {f2u(1.0/1024)}, v{dst}")
    reduce32(lambda i: 24 + i, 56, 0)
    for i in range(32):
        a(f"v_sub_f32 v{66+i}, v{24+i}, v56")
        a(f"v_mul_f32 v{66+i}, v{66+i}, v{66+i}")
    reduce32(lambda i: 66 + i, 57, 128)
    a("v_cvt_pk_bf16_f32 v58, v56, v57")
    a("v_lshlrev_b32 v56, 16, v58")
    a("v_and_b32 v57, 0xffff0000, v58")
    a(f"v_add_f32 v57, {f2u(1e-5)}, v57")
    a("v_cvt_pk_bf16_f32 v57, v57, v57"); a("v_and_b32 v57, 0xffff0000, v57")
    a("v_sqrt_f32 v57, v57")
    a("v_cvt_pk_bf16_f32 v57, v57, v57"); a("v_and_b32 v57, 0xffff0000, v57")
    a("v_rcp_f32 v58, v57")
    for i in range(16):
        x0, x1 = 24 + 2 * i, 25 + 2 * i
        a(f"v_sub_f32 v{x0}, v{x0}, v56"); a(f"v_sub_f32 v{x1}, v{x1}, v56")
        a(f"v_cvt_pk_bf16_f32 v{66}, v{x0}, v{x1}")
        a(f"v_lshlrev_b32 v{x0}, 16, v66"); a(f"v_and_b32 v{x1}, 0xffff0000, v66")
        for x, t in ((x0, 67), (x1, 69)):
            a(f"v_mul_f32 v{t}, v{x}, v58")
            a(f"v_fma_f32 v{t+1}, -v{t}, v57, v{x}")
            a(f"v_fma_f32 v{t}, v{t+1}, v58, v{t}")
        a(f"v_cvt_pk_bf16_f32 v{8+i}, v67, v69")
    for i in range(4):
        a(f"buffer_store_dwordx4 v[{8+4*i}:{11+4*i}], v6, s[12:15], s{20 + 2*(i//2)} offen offset:{2048*(i%2)}")
    a.label("L_ln_end")
    a("s_endpgm")

XR, HR = 0, 65536
QR = HR + 4096
GR = QR + 4 * 7168
UR = GR + 4 * 7168
G1_LDS = UR + 4 * 7168
QKV_K = 18432; PSTR = 9216

class G1:
    sMT, sNT, sW, sMH, sNH, sODD, sS, sJ = 12, 13, 14, 15, 16, 17, 18, 19
    SX, SA = 20, 24
    SD = 28
    sCur, sStr, sMb = 48, 53, 58
    sOX, sMXb, sOH, sCnt = 63, 64, 65, 66
    vDX, vDW = 192, 196
    vX, vWa, vWb, vWc, vLane, vHX = 201, 202, 203, 204, 205, 206
    vP = 207
    T = 208
    HACC, XB, WB, HXB = 128, 136, 200, 248

def acc(t, i):
    f = t * 8 + i
    return ("v", 4 * f) if f < 48 else ("a", 4 * (f - 48))

def gen_g1(a, cfg):
    g = G1; k = K(a)
    NPRE = cfg.get("g1_npre", 2)
    T0, T1, T2, T3 = g.T, g.T + 1, g.T + 2, g.T + 3
    header(a, "g1_kernel")
    a("s_cmp_ge_u32 s2, 256"); a("s_cbranch_scc1 L_g1_end")
    if cfg.get("prof"): a(f"v_mov_b32 v{g.vP}, 0")
    stamp(k, cfg, g.vP, 0)
    a("s_load_dwordx2 s[4:5], s[0:1], 8")
    a("s_load_dwordx4 s[8:11], s[0:1], 32")
    a("s_load_dwordx2 s[6:7], s[0:1], 72")
    a(f"v_and_b32 v{g.vLane}, 63, v0")
    a(f"v_lshrrev_b32 v{T0}, 6, v0")
    a(f"v_readfirstlane_b32 s{g.sW}, v{T0}")
    wg_decode(k, g.sMT, g.sS, g.sJ, 67)
    a(f"s_lshl_b32 s{g.sNT}, s{g.sS}, 3"); a(f"s_add_u32 s{g.sNT}, s{g.sNT}, s{g.sJ}")
    a(f"s_and_b32 s{g.sODD}, s{g.sJ}, 1")
    a(f"s_and_b32 s{g.sMH}, s{g.sW}, 1"); a(f"s_lshr_b32 s{g.sNH}, s{g.sW}, 1")
    a(f"v_lshlrev_b32 v{g.vDX}, 4, v{g.vLane}")
    for i in range(1, 4): a(f"v_add_u32 v{g.vDX+i}, {i*32768}, v{g.vDX}")
    a(f"s_lshl_b32 s{g.sOX}, s{g.sMT}, 2"); a(f"s_add_u32 s{g.sOX}, s{g.sOX}, s{g.sW}"); a(f"s_lshl_b32 s{g.sOX}, s{g.sOX}, 17")
    a(f"s_lshl_b32 s{g.sMXb}, s{g.sW}, 12")
    if XR: a(f"s_add_u32 s{g.sMXb}, s{g.sMXb}, {XR}")
    a(f"s_lshl_b32 s{g.sOH}, s{g.sMT}, 19"); a(f"s_sub_u32 s{g.sOH}, s{g.sOH}, 32768")
    a(f"s_cmp_eq_u32 s{g.sMT}, 0"); a(f"s_cselect_b32 s{g.sOH}, 0x40000000, s{g.sOH}")
    a("s_waitcnt lgkmcnt(0)")
    srd(k, g.SX, 6, 7, 2048 * 2048, XN_OFF)
    def xdma(q):
        L = []
        for i in range(4):
            L += [(f"s_add_u32 m0, s{g.sMXb}, {q*16384 + i*1024}", None),
                  (f"buffer_load_dwordx4 v{g.vDX+i}, s[{g.SX}:{g.SX+3}], s{g.sOX} offen lds", q)]
        L.append((f"s_add_u32 s{g.sOX}, s{g.sOX}, 1024", None))
        return L
    def hdma(q):
        return [(f"s_mov_b32 m0, {HR + q*1024}", None),
                (f"buffer_load_dwordx4 v{g.vDX}, s[{g.SX}:{g.SX+3}], s{g.sOH} offen lds", q),
                (f"s_add_u32 s{g.sOH}, s{g.sOH}, 1024", None)]
    def wdma(q):
        L = []
        for d in range(5):
            S = g.SD + 4 * d
            L += [(f"s_add_u32 m0, s{g.sMb+d}, {q*7168}", None),
                  (f"buffer_load_dwordx4 v{g.vDW+d}, s[{S}:{S+3}], s{g.sCur+d} offen lds", q),
                  (f"s_add_u32 s{g.sCur+d}, s{g.sCur+d}, s{g.sStr+d}", None)]
        return L
    for t, tag in xdma(0): k(t, tag)
    for d in range(5):
        S = g.SD + 4 * d; vD = g.vDW + d
        a(f"s_add_u32 s67, s{g.sW}, {4*d}")
        if d <= 1:
            a("s_cmp_ge_u32 s67, 6"); a(f"s_cbranch_scc1 L_g1_d{d}_gu")
            srd(k, S, 4, 5, 1024 * 6144)
            a("s_lshl_b32 s68, s67, 6")
            a(f"v_add_u32 v{T0}, s68, v{g.vLane}")
            a(f"v_mul_u32_u24 v{T1}, 5462, v{T0}"); a(f"v_lshrrev_b32 v{T1}, 16, v{T1}")
            a(f"v_mul_u32_u24 v{T2}, 12, v{T1}"); a(f"v_sub_u32 v{T2}, v{T0}, v{T2}")
            a(f"v_lshrrev_b32 v{T3}, 2, v{T2}"); a(f"v_lshlrev_b32 v{vD}, 11, v{T3}")
            a(f"v_lshrrev_b32 v{T3}, 1, v{T1}"); a(f"v_and_b32 v{T3}, 2, v{T3}")
            a(f"v_xor_b32 v{T2}, v{T2}, v{T3}"); a(f"v_and_b32 v{T2}, 3, v{T2}")
            a(f"v_lshl_add_u32 v{vD}, v{T2}, 4, v{vD}")
            a(f"s_lshl_b32 s{g.sCur+d}, s{g.sNT}, 6"); a(f"s_mov_b32 s{g.sStr+d}, {32*6144}")
            a(f"s_lshl_b32 s{g.sMb+d}, s67, 10"); a(f"s_add_u32 s{g.sMb+d}, s{g.sMb+d}, {QR}")
            a("s_movk_i32 s69, 6144")
            a(f"s_branch L_g1_d{d}_k")
            a.label(f"L_g1_d{d}_gu")
        a("s_cmp_ge_u32 s67, 13")
        a(f"s_cselect_b32 s{S}, s10, s8"); a(f"s_cselect_b32 s{S+1}, s11, s9")
        a("s_cselect_b32 s68, 13, 6")
        a(f"s_mov_b32 s{g.sMb+d}, {GR}"); a(f"s_cselect_b32 s{g.sMb+d}, {UR}, s{g.sMb+d}")
        a(f"s_mov_b32 s{S+2}, {1024*7168}"); a(f"s_mov_b32 s{S+3}, 0x20000")
        a("s_sub_u32 s67, s67, s68")
        a("s_lshl_b32 s68, s67, 10"); a(f"s_add_u32 s{g.sMb+d}, s{g.sMb+d}, s68")
        a("s_lshl_b32 s68, s67, 6")
        a(f"v_add_u32 v{T0}, s68, v{g.vLane}")
        a(f"v_mul_u32_u24 v{T1}, 4682, v{T0}"); a(f"v_lshrrev_b32 v{T1}, 16, v{T1}")
        a(f"v_mul_u32_u24 v{T2}, 14, v{T1}"); a(f"v_sub_u32 v{T2}, v{T0}, v{T2}")
        a(f"v_lshlrev_b32 v{vD}, 4, v{T2}")
        a(f"s_mul_i32 s{g.sCur+d}, s{g.sNT}, 224"); a(f"s_mov_b32 s{g.sStr+d}, {32*7168}")
        a("s_movk_i32 s69, 7168")
        a.label(f"L_g1_d{d}_k")
        a(f"v_bfe_u32 v{T2}, v{T1}, 2, 2"); a(f"v_lshlrev_b32 v{T2}, 3, v{T2}")
        a(f"v_lshrrev_b32 v{T3}, 4, v{T1}"); a(f"v_lshl_add_u32 v{T2}, v{T3}, 2, v{T2}")
        a(f"v_and_b32 v{T3}, 3, v{T1}"); a(f"v_add_u32 v{T2}, v{T2}, v{T3}")
        a(f"v_mad_u32_u24 v{vD}, v{T2}, s69, v{vD}")
    kpro = (list(k.lq), list(k.vq))
    srd(k, g.SA, 6, 7, ACT_BYTES, ACT_OFF)
    a(f"s_cmp_eq_u32 s{g.sNH}, 1"); a("s_cbranch_scc1 L_g1_p2")
    a(f"s_cmp_eq_u32 s{g.sMH}, 1"); a("s_cbranch_scc1 L_g1_p1")

    XBUF = [g.XB, g.XB + 32]
    def wreg(t, par): return g.WB + 4 * t if t < 8 else g.WB + 32 + 4 * (t - 8) + 8 * par
    def wsrc(nh, t):
        if nh == 0:
            if t < 6: return (g.vWa if t % 2 == 0 else g.vWb, t * 32, 192)
            return (g.vWc, (t % 2) * 32 + (UR - GR if t >= 8 else 0), 224)
        u = t >= 5; tt = t % 5
        return (g.vWa if tt < 4 else g.vWb, (tt * 32 if tt < 4 else 0) + (UR - GR if u else 0), 224)
    def wread(nh, t, q, par):
        v, o, st = wsrc(nh, t); d = wreg(t, par); o += q * 7168
        return [(f"ds_read_b64_tr_b16 a[{d}:{d+1}], v{v} offset:{o}", None),
                (f"ds_read_b64_tr_b16 a[{d+2}:{d+3}], v{v} offset:{o+16*st}", None)]
    def xread(nh, q, par):
        L = [(f"ds_read_b128 {R('a', XBUF[par]+4*i)}, v{g.vX} offset:{q*16384+i*1024}", None) for i in range(8)]
        if nh == 0: L.append((f"ds_read_b128 {R('a', g.HXB+4*par)}, v{g.vHX} offset:{q*1024}", None))
        return L

    for path in range(3):
        nh = 1 if path == 2 else 0
        hsel = (2, 4, None)[path]
        if path: a.label(f"L_g1_p{path}")
        k.lq, k.vq = list(kpro[0]), list(kpro[1])
        def dma(q):
            x = xdma(q); w = wdma(q); h = hdma(q) if nh else []
            return x + w + h
        for t, tag in wdma(0) + (hdma(0) if nh else []): k(t, tag)
        for q in range(1, 4):
            for t, tag in dma(q): k(t, tag)
        L = g.vLane
        a(f"s_lshl_b32 s67, s{g.sMH}, 13"); a(f"v_add_u32 v{g.vX}, s67, v{g.vDX}")
        if XR: a(f"v_add_u32 v{g.vX}, {XR}, v{g.vX}")
        a(f"v_add_u32 v{g.vHX}, {HR}, v{g.vDX}")
        a(f"v_lshrrev_b32 v{T0}, 4, v{L}"); a(f"v_bfe_u32 v{T1}, v{L}, 2, 2"); a(f"v_lshl_add_u32 v{T1}, v{T0}, 2, v{T1}")
        a(f"v_and_b32 v{T2}, 3, v{L}"); a(f"v_lshlrev_b32 v{T2}, 3, v{T2}")
        a(f"v_mul_u32_u24 v{T3}, 224, v{T1}"); a(f"v_add_u32 v{T3}, v{T3}, v{T2}")
        if nh == 0:
            a(f"v_mul_u32_u24 v{g.vWa}, 192, v{T1}"); a(f"v_add_u32 v{g.vWa}, v{g.vWa}, v{T2}"); a(f"v_add_u32 v{g.vWa}, {QR}, v{g.vWa}")
            a(f"v_and_b32 v{T0}, 1, v{T0}"); a(f"v_lshlrev_b32 v{T0}, 5, v{T0}")
            a(f"v_sub_u32 v{g.vWb}, v{g.vWa}, v{T0}"); a(f"v_add_u32 v{g.vWa}, v{g.vWa}, v{T0}")
            a(f"s_mul_i32 s67, s{g.sODD}, 160"); a(f"s_add_u32 s67, s67, {GR}"); a(f"v_add_u32 v{g.vWc}, s67, v{T3}")
        else:
            a(f"s_lshl_b32 s67, s{g.sODD}, 5"); a(f"s_sub_u32 s67, {GR+64}, s67"); a(f"v_add_u32 v{g.vWa}, s67, v{T3}")
            a(f"s_mul_i32 s67, s{g.sODD}, 192"); a(f"s_sub_u32 s67, {GR+192}, s67"); a(f"v_add_u32 v{g.vWb}, s67, v{T3}")
        for r in range(192): a(f"v_mov_b32 v{r}, 0")
        for r in range(136 if nh == 0 else 128): a(f"v_accvgpr_write_b32 a{r}, 0")
        stamp(k, cfg, g.vP, 1)
        k.wait_vm(0); a("s_barrier")
        stamp(k, cfg, g.vP, 2)
        for t, _ in xread(nh, 0, 0): k(t)
        for t in range(10):
            for x, _ in wread(nh, t, 0, 0): k(x)

        def phase(k, q, do_dma, last):
            par = q & 1
            M = []; free = {}
            for t in range(10):
                for i in range(8):
                    kd, c = acc(t, i)
                    M.append(f"{MF} {R(kd, c)}, {R('a', wreg(t, par))}, {R('a', XBUF[par]+4*i)}, {R(kd, c)}")
                if hsel is not None and t in (hsel, hsel + 1):
                    c = g.HACC + 4 * (t - hsel)
                    M.append(f"{MF} {R('a', c)}, {R('a', wreg(t, par))}, {R('a', g.HXB+4*par)}, {R('a', c)}")
                free[t] = len(M)
            for m in M[:NPRE]: k(m)
            k.wait_vm((q + 1) % 4, lgkm0=True); k.raw("s_barrier")
            if last:
                for m in M[NPRE:]: k(m)
                return
            n = len(M) - NPRE
            F = spread(xread(nh, (q + 1) % 4, par ^ 1), 0, n - 14, "x")
            wl, we = [], []
            for t in (8, 9, 0, 1, 2, 3, 4, 5, 6, 7):
                wl += wread(nh, t, (q + 1) % 4, par ^ 1); e = 0 if t >= 8 else free[t] - NPRE; we += [e, e]
            F += spread(wl, 1, n - 12, "w", we)
            if do_dma: F += spread(dma(q), 0, cfg.get("g1_dend", n - 1), "d")
            for t, tag in schedule(M[NPRE:], F, cfg.get("cap", 1)): k(t, tag)
        a(f"s_mov_b32 s{g.sCnt}, 0")
        def body(k):
            k.label(f"L_g1_loop{path}")
            for q in range(4): phase(k, q, True, False)
            if cfg.get("prof"):
                k.raw(f"s_add_u32 s100, s{g.sCnt}, 3"); stamp(k, cfg, g.vP, "s100")
            k.raw(f"s_add_u32 s{g.sCnt}, s{g.sCnt}, 1"); k.raw(f"s_cmp_lt_u32 s{g.sCnt}, 7"); k.raw(f"s_cbranch_scc1 L_g1_loop{path}")
        k.loop(body)
        for q in range(4): phase(k, q, False, q == 3)
        stamp(k, cfg, g.vP, 10)
        if path == 0:
            a("s_branch L_g1_epi0")
        else:
            if path == 1: a.label("L_g1_epi0")
            g1_epilogue(k, cfg, nh)
            stamp(k, cfg, g.vP, 13)
            prof_store(k, cfg, g.vP, g.T, g.sW, 0)
            if path == 1: a("s_branch L_g1_end")
    a.label("L_g1_end")
    a("s_endpgm")

def glu_block(k, F, tmp, P, store):
    L = []
    G = []; U = []
    n = 0
    for (gk, gr), (uk, ur) in F:
        for j in range(4):
            if gk == "a":
                L.append(f"v_accvgpr_read_b32 v{tmp+n}, a{gr+j}"); G.append(tmp + n); n += 1
            else: G.append(gr + j)
            if uk == "a":
                L.append(f"v_accvgpr_read_b32 v{tmp+n}, a{ur+j}"); U.append(tmp + n); n += 1
            else: U.append(ur + j)
    for x in G: L.append(f"v_mul_f32 v{x}, s70, v{x}")
    for x in G: L.append(f"v_exp_f32 v{x}, v{x}")
    for x in G: L.append(f"v_add_f32 v{x}, 1.0, v{x}")
    for x in G: L.append(f"v_rcp_f32 v{x}, v{x}")
    for x, u in zip(G, U): L.append(f"v_mul_f32 v{x}, v{x}, v{u}")
    for j in range(4): L.append(f"v_cvt_pk_bf16_f32 v{P+j}, v{G[2*j]}, v{G[2*j+1]}")
    L.append(f"v_permlane16_swap_b32 v{P}, v{P+2}")
    L.append(f"v_permlane16_swap_b32 v{P+1}, v{P+3}")
    L += store(P)
    return L

def g1_epilogue(k, cfg, nh):
    g = G1; a = k.raw
    L = g.vLane; SA = g.SA
    T0, T1, T2, T3 = g.T, g.T + 1, g.T + 2, g.T + 3
    vI, vG, vST = 192, 193, 194
    a(f"s_lshl_b32 s64, s{g.sMT}, 1"); a(f"s_add_u32 s64, s64, s{g.sMH}"); a(f"s_mul_i32 s64, s64, {8*MFS}")
    a(f"s_lshr_b32 s67, s{g.sJ}, 1"); a("s_mul_i32 s67, s67, 9"); a(f"s_mul_i32 s68, s{g.sS}, 36"); a("s_add_u32 s67, s67, s68")
    a("s_lshl_b32 s67, s67, 10"); a("s_add_u32 s64, s64, s67")
    a(f"s_mov_b32 s70, {f2u(-LOG2E)}")
    a(f"v_and_b32 v{vI}, 15, v{L}"); a(f"v_lshrrev_b32 v{vG}, 4, v{L}")
    vC = 195
    a(f"v_and_b32 v{T0}, 1, v{vG}"); a(f"v_lshrrev_b32 v{T1}, 1, v{vG}"); a(f"v_lshl_add_u32 v{vC}, v{T0}, 1, v{T1}")
    a(f"v_lshlrev_b32 v{vST}, 4, v{vI}"); a(f"v_lshl_add_u32 v{vST}, v{vC}, 8, v{vST}")
    def st_full(i, sreg):
        def store(P):
            return [f"s_add_u32 s66, s{sreg}, {i*MFS}",
                    f"buffer_store_dwordx4 v[{P}:{P+3}], v{vST}, s[{SA}:{SA+3}], s66 offen"]
        return store
    if nh == 1:
        for j in range(4): a(f"v_mov_b32 v{T0+j}, 0")
        a(f"v_lshrrev_b32 v{196}, 5, v{L}"); a(f"v_mul_u32_u24 v196, {PSTR}, v196")
        a(f"v_and_b32 v197, 31, v{L}"); a(f"v_lshl_add_u32 v196, v197, 4, v196")
        k(f"ds_write_b128 v196, v[{T0}:{T0+3}] offset:{2*QKV_K}")
        k.wait_lgkm0(); a("s_barrier")
        a(f"s_mul_i32 s67, s{g.sODD}, 3072"); a("s_add_u32 s71, s64, s67"); a("s_add_u32 s71, s71, 2048"); a("s_add_u32 s72, s71, 1024")
        a(f"s_lshl_b32 s67, s{g.sODD}, 9"); a("s_add_u32 s73, s64, s67"); a("s_add_u32 s73, s73, 4096")
        vSS = 196
        a(f"v_and_b32 v{T0}, 1, v{vG}"); a(f"v_mul_u32_u24 v{vSS}, {MFS}, v{T0}")
        a(f"v_lshrrev_b32 v{T0}, 1, v{vG}"); a(f"v_lshl_add_u32 v{vSS}, v{T0}, 8, v{vSS}"); a(f"v_lshl_add_u32 v{vSS}, v{vI}, 4, v{vSS}")
        n = 0
        for i in range(8):
            for b in range(2):
                F = [(acc(2*b + f, i), acc(5 + 2*b + f, i)) for f in range(2)]
                for x in glu_block(k, F, 208 + 24 * (n % 2), 224 + 24 * (n % 2) + 4 * ((n // 2) % 2), st_full(i, 71 + b)): k(x)
                n += 1
            if i % 2 == 1:
                F = [(acc(4, i - 1 + f), acc(9, i - 1 + f)) for f in range(2)]
                def store(P, i=i):
                    return [f"s_add_u32 s66, s73, {(i-1)*MFS}",
                            f"buffer_store_dwordx4 v[{P}:{P+3}], v{vSS}, s[{SA}:{SA+3}], s66 offen"]
                for x in glu_block(k, F, 208 + 24 * (n % 2), 224 + 24 * (n % 2) + 4 * ((n // 2) % 2), store): k(x)
                n += 1
        return
    vA, vAH = 196, 197
    a(f"v_and_b32 v{T0}, 1, v{vI}"); a(f"v_mul_u32_u24 v{vA}, {PSTR}, v{T0}")
    a(f"v_lshrrev_b32 v{T0}, 1, v{vI}"); a(f"v_lshl_add_u32 v{vA}, v{T0}, 6, v{vA}")
    a(f"v_lshrrev_b32 v{T0}, 3, v{vI}"); a(f"v_lshlrev_b32 v{T0}, 5, v{T0}"); a(f"v_lshlrev_b32 v{T1}, 4, v{vC}")
    a(f"v_xor_b32 v{T0}, v{T0}, v{T1}"); a(f"v_add_u32 v{vA}, v{vA}, v{T0}")
    a(f"s_mul_i32 s67, s{g.sMH}, {QKV_K}"); a(f"s_add_u32 s67, s67, {QKV_K + 512}"); a(f"v_add_u32 v{vAH}, s67, v{vA}")
    a(f"s_lshl_b32 s67, s{g.sMH}, 12"); a("s_add_u32 s67, s67, 1024"); a(f"v_add_u32 v{vA}, s67, v{vA}")
    n = 0
    for kind in (1, 2, 0):
        for i in range(8):
            P = 208 + 4 * (n % 8); n += 1
            r0 = acc(2 * kind, i)[1]; r1 = acc(2 * kind + 1, i)[1]
            k(f"v_cvt_pk_bf16_f32 v{P}, v{r0}, v{r0+1}"); k(f"v_cvt_pk_bf16_f32 v{P+1}, v{r0+2}, v{r0+3}")
            k(f"v_cvt_pk_bf16_f32 v{P+2}, v{r1}, v{r1+1}"); k(f"v_cvt_pk_bf16_f32 v{P+3}, v{r1+2}, v{r1+3}")
            k(f"v_permlane16_swap_b32 v{P}, v{P+2}"); k(f"v_permlane16_swap_b32 v{P+1}, v{P+3}")
            k(f"ds_write_b128 v{vA}, v[{P}:{P+3}] offset:{kind*QKV_K + i*512}")
    for j in range(8): k(f"v_accvgpr_read_b32 v{240+j}, a{g.HACC+j}")
    P = 248
    for j in range(4): k(f"v_cvt_pk_bf16_f32 v{P+j}, v{240+2*j}, v{241+2*j}")
    k(f"v_permlane16_swap_b32 v{P}, v{P+2}"); k(f"v_permlane16_swap_b32 v{P+1}, v{P+3}")
    k(f"ds_write_b128 v{vAH}, v[{P}:{P+3}]")
    vKQ, vV0, vV1, vO, vNEG = 198, 199, 200, 201, 202
    a(f"v_lshlrev_b32 v{vKQ}, 6, v{vI}")
    a(f"v_bfe_u32 v{T0}, v{L}, 2, 1"); a(f"v_lshlrev_b32 v{T0}, 5, v{T0}")
    a(f"v_lshlrev_b32 v{T1}, 4, v{vG}"); a(f"v_xor_b32 v{T0}, v{T0}, v{T1}"); a(f"v_add_u32 v{vKQ}, v{vKQ}, v{T0}")
    a(f"s_lshl_b32 s67, s{g.sMH}, 12"); a(f"v_add_u32 v{vKQ}, s67, v{vKQ}")
    a(f"v_lshrrev_b32 v{T0}, 2, v{L}"); a(f"v_lshlrev_b32 v{vV0}, 6, v{T0}")
    a(f"v_and_b32 v{T0}, 1, v{vG}"); a(f"v_lshl_add_u32 v{vV0}, v{T0}, 5, v{vV0}")
    a(f"v_and_b32 v{T0}, 3, v{L}"); a(f"v_lshl_add_u32 v{vV0}, v{T0}, 3, v{vV0}")
    a(f"v_add_u32 v{vV0}, s67, v{vV0}"); a(f"v_xor_b32 v{vV1}, 32, v{vV0}")
    a(f"v_lshrrev_b32 v{T0}, 3, v{vI}"); a(f"v_mul_u32_u24 v{vO}, {MFS}, v{T0}")
    a(f"v_lshl_add_u32 v{vO}, v{vC}, 8, v{vO}")
    a(f"v_and_b32 v{T0}, 7, v{vI}"); a(f"v_lshl_add_u32 v{vO}, v{T0}, 5, v{vO}")
    a(f"v_mov_b32 v{vNEG}, {f2u(-1e30)}")
    MA, MB, MA0 = 72, 80, 88
    a(f"v_add_u32 v{T1}, 9, v{vI}")
    for rr in range(4):
        a(f"v_lshl_add_u32 v{T0}, v{vG}, 2, {rr}")
        a(f"v_cmp_ge_u32 s[{MA+2*rr}:{MA+2*rr+1}], v{T0}, v{T1}")
        a(f"v_sub_u32 v{T2}, v{vI}, v{T0}")
        a(f"v_cmp_ge_u32 s[{MB+2*rr}:{MB+2*rr+1}], 7, v{T2}")
    a(f"s_or_b32 s67, s{g.sMT}, s{g.sMH}"); a("s_cmp_eq_u32 s67, 0"); a("s_cselect_b64 s[68:69], 0, -1")
    for rr in range(4): a(f"s_and_b64 s[{MA0+2*rr}:{MA0+2*rr+1}], s[{MA+2*rr}:{MA+2*rr+1}], s[68:69]")
    a(f"s_mov_b32 s71, {f2u(LOG2E / math.sqrt(32.0))}")
    a(f"s_lshl_b32 s67, s{g.sODD}, 13"); a("s_add_u32 s65, s64, s67")
    a(f"s_mul_i32 s67, s{g.sODD}, 6144"); a("s_add_u32 s63, s64, s67"); a("s_add_u32 s63, s63, 1024")
    k.wait_lgkm0(); a("s_barrier")
    stamp(k, cfg, g.vP, 11)
    def unit(bb, par, B):
        KA, KB, Q, V0, V1, SAa, SBb, P, O0, O1, M, T, S = B, B+4, B+8, B+12, B+16, B+20, B+24, B+28, B+32, B+36, B+40, B+41, B+42
        ob = par * PSTR + bb * 1024
        Lr = [f"ds_read_b128 v[{KA}:{KA+3}], v{vKQ} offset:{QKV_K+ob}",
             f"ds_read_b128 v[{KB}:{KB+3}], v{vKQ} offset:{QKV_K+ob+1024}",
             f"ds_read_b128 v[{Q}:{Q+3}], v{vKQ} offset:{ob+1024}",
             f"ds_read_b64_tr_b16 v[{V0}:{V0+1}], v{vV0} offset:{2*QKV_K+ob}",
             f"ds_read_b64_tr_b16 v[{V0+2}:{V0+3}], v{vV0} offset:{2*QKV_K+ob+1024}",
             f"ds_read_b64_tr_b16 v[{V1}:{V1+1}], v{vV1} offset:{2*QKV_K+ob}",
             f"ds_read_b64_tr_b16 v[{V1+2}:{V1+3}], v{vV1} offset:{2*QKV_K+ob+1024}"]
        Lc = [f"{MF} v[{SAa}:{SAa+3}], v[{KA}:{KA+3}], v[{Q}:{Q+3}], 0",
              f"{MF} v[{SBb}:{SBb+3}], v[{KB}:{KB+3}], v[{Q}:{Q+3}], 0"]
        ma = MA0 if bb == 0 else MA
        for rr in range(4): Lc.append(f"v_cndmask_b32 v{SAa+rr}, v{vNEG}, v{SAa+rr}, s[{ma+2*rr}:{ma+2*rr+1}]")
        for rr in range(4): Lc.append(f"v_cndmask_b32 v{SBb+rr}, v{vNEG}, v{SBb+rr}, s[{MB+2*rr}:{MB+2*rr+1}]")
        X = [SAa + j for j in range(8)]
        Lc += [f"v_max3_f32 v{M}, v{X[0]}, v{X[1]}, v{X[2]}", f"v_max3_f32 v{T}, v{X[3]}, v{X[4]}, v{X[5]}",
              f"v_max3_f32 v{M}, v{M}, v{X[6]}, v{X[7]}", f"v_max_f32 v{M}, v{M}, v{T}"]
        Lc += [f"v_mov_b32 v{T}, v{M}", f"v_permlane16_swap_b32 v{M}, v{T}", f"v_max_f32 v{M}, v{M}, v{T}",
              f"v_mov_b32 v{T}, v{M}", f"v_permlane32_swap_b32 v{M}, v{T}", f"v_max_f32 v{M}, v{M}, v{T}"]
        Lc.append(f"v_mul_f32 v{M}, s71, v{M}")
        for x in X: Lc.append(f"v_fma_f32 v{x}, v{x}, s71, -v{M}")
        for x in X: Lc.append(f"v_exp_f32 v{x}, v{x}")
        Lc += [f"v_add_f32 v{S}, v{X[0]}, v{X[1]}", f"v_add_f32 v{T}, v{X[2]}, v{X[3]}", f"v_add_f32 v{M}, v{X[4]}, v{X[5]}",
              f"v_add_f32 v{S}, v{S}, v{T}", f"v_add_f32 v{T}, v{X[6]}, v{X[7]}", f"v_add_f32 v{M}, v{M}, v{T}", f"v_add_f32 v{S}, v{S}, v{M}"]
        Lc += [f"v_mov_b32 v{T}, v{S}", f"v_permlane16_swap_b32 v{S}, v{T}", f"v_add_f32 v{S}, v{S}, v{T}",
              f"v_mov_b32 v{T}, v{S}", f"v_permlane32_swap_b32 v{S}, v{T}", f"v_add_f32 v{S}, v{S}, v{T}"]
        Lc.append(f"v_rcp_f32 v{S}, v{S}")
        for x in X: Lc.append(f"v_mul_f32 v{x}, v{x}, v{S}")
        for j in range(4): Lc.append(f"v_cvt_pk_bf16_f32 v{P+j}, v{X[2*j]}, v{X[2*j+1]}")
        Lc += [f"{MF} v[{O0}:{O0+3}], v[{V0}:{V0+3}], v[{P}:{P+3}], 0",
               f"{MF} v[{O1}:{O1+3}], v[{V1}:{V1+3}], v[{P}:{P+3}], 0"]
        D = KA
        Lc += [f"v_cvt_pk_bf16_f32 v{D}, v{O0}, v{O0+1}", f"v_cvt_pk_bf16_f32 v{D+1}, v{O0+2}, v{O0+3}",
              f"v_cvt_pk_bf16_f32 v{D+2}, v{O1}, v{O1+1}", f"v_cvt_pk_bf16_f32 v{D+3}, v{O1+2}, v{O1+3}",
              f"v_permlane16_swap_b32 v{D}, v{D+2}", f"v_permlane16_swap_b32 v{D+1}, v{D+3}",
              f"buffer_store_dwordx4 v[{D}:{D+3}], v{vO}, s[{SA}:{SA+3}], s{48+bb} offen offset:{par*16}"]
        return Lr, Lc
    for bb in range(4): a(f"s_add_u32 s{48+bb}, s65, {2*bb*MFS}")
    for half in range(2):
        U = [unit(2 * half + (u >> 1), u & 1, 48 * u) for u in range(4)]
        for Lr, _ in U:
            for x in Lr: k(x)
        for xs in zip(*[Lc for _, Lc in U]):
            for x in xs: k(x)
    stamp(k, cfg, g.vP, 12)
    for i in range(8):
        F = [(acc(6 + f, i), acc(8 + f, i)) for f in range(2)]
        for x in glu_block(k, F, 24 * (i % 4), 24 * (i % 4) + 16, st_full(i, 63)): k(x)

G2_NS = 6
G2_WR = G2_NS * 16384
G2_LDS = G2_WR + G2_NS * 8192

def gen_g2(a, cfg):
    NS = G2_NS; NPH = 36
    NPRE = cfg.get("g2_npre", 2)
    k = K(a)
    header(a, KN)
    XB = [128, 160]; WB = [192, 208]
    vDX, vDW, vX0, vX1, vW, vLane, vTab, vP = 224, 228, 230, 231, 232, 236, 237, 238
    T0, T1, T2, T3 = 240, 241, 242, 243
    sS, sTM, sTN, sW, sTile, sMH, sNH = 12, 13, 14, 15, 3, 16, 17
    SX, SW, SP, SF, SXR, SO = 20, 24, 28, 32, 36, 40
    sCX, sCW, sOX, sOW, sMXb, sMWb, sCnt = 44, 45, 48, 49, 50, 51, 52
    a("s_cmp_ge_u32 s2, 256"); a("s_cbranch_scc1 L_g2_end")
    if cfg.get("prof"): a(f"v_mov_b32 v{vP}, 0")
    stamp(k, cfg, vP, 0)
    a("s_load_dwordx2 s[4:5], s[0:1], 16")
    a("s_load_dwordx4 s[8:11], s[0:1], 48")
    a("s_load_dwordx2 s[6:7], s[0:1], 72")
    a("s_load_dwordx2 s[46:47], s[0:1], 0")
    a(f"v_and_b32 v{vLane}, 63, v0")
    a(f"v_lshrrev_b32 v{T0}, 6, v0")
    a(f"v_readfirstlane_b32 s{sW}, v{T0}")
    wg_decode(k, sTM, sS, sTN, 60)
    a(f"s_lshl_b32 s{sTile}, s{sTM}, 3"); a(f"s_add_u32 s{sTile}, s{sTile}, s{sTN}")
    a(f"s_and_b32 s{sMH}, s{sW}, 1"); a(f"s_lshr_b32 s{sNH}, s{sW}, 1")
    a(f"s_lshr_b32 s60, s{sTN}, 1"); a("s_mul_i32 s60, s60, 9"); a(f"s_and_b32 s61, s{sTN}, 1"); a("s_mul_i32 s61, s61, 5")
    a(f"s_add_u32 s{sCX}, s60, s61"); a(f"s_mov_b32 s{sCW}, s{sCX}")
    a(f"s_lshl_b32 s60, s{sTM}, 2"); a(f"s_add_u32 s60, s60, s{sW}"); a(f"s_mul_i32 s60, s60, {4*MFS}")
    a(f"s_mul_i32 s61, s{sS}, {36*1024}"); a("s_add_u32 s60, s60, s61")
    a(f"v_lshlrev_b32 v{T3}, 4, v{vLane}")
    a(f"v_add_u32 v{vDX}, s60, v{T3}")
    for i in range(1, 4): a(f"v_add_u32 v{vDX+i}, {i*MFS}, v{vDX}")
    a(f"s_lshl_b32 s{sMXb}, s{sW}, 12")
    a(f"s_lshl_b32 s{sMWb}, s{sW}, 11"); a(f"s_add_u32 s{sMWb}, s{sMWb}, {G2_WR}")
    a(f"v_mul_u32_u24 v{T0}, 7282, v{vLane}"); a(f"v_lshrrev_b32 v{T0}, 16, v{T0}")
    a(f"v_mul_u32_u24 v{T1}, 9, v{T0}"); a(f"v_sub_u32 v{T1}, v{vLane}, v{T1}")
    a(f"s_lshl_b32 s60, s{sS}, 2"); a(f"v_add_u32 v{T0}, s60, v{T0}")
    a(f"v_mul_u32_u24 v{vTab}, 224, v{T0}"); a(f"v_lshl_add_u32 v{vTab}, v{T1}, 5, v{vTab}"); a(f"v_subrev_u32 v{vTab}, 32, v{vTab}")
    a(f"v_lshlrev_b32 v{vTab}, 11, v{vTab}")
    a(f"v_lshrrev_b32 v{T2}, 3, v{T1}"); a(f"v_lshl_add_u32 v{T2}, v{T0}, 1, v{T2}")
    a(f"v_lshlrev_b32 v{T2}, 16, v{T2}"); a(f"v_or_b32 v{T2}, 1, v{T2}")
    a(f"v_and_b32 v{T1}, 7, v{T1}"); a(f"v_cmp_eq_u32 vcc, 0, v{T1}")
    a(f"v_cndmask_b32 v{vTab}, v{vTab}, v{T2}, vcc")
    for e in range(2):
        a(f"s_lshl_b32 s60, s{sW}, 3"); a(f"s_add_u32 s60, s60, {4*e}")
        a(f"v_lshrrev_b32 v{T0}, 4, v{vLane}"); a(f"v_add_u32 v{T0}, s60, v{T0}")
        a(f"v_lshrrev_b32 v{T1}, 1, v{vLane}"); a(f"v_xor_b32 v{T1}, v{T1}, v{T0}"); a(f"v_and_b32 v{T1}, 7, v{T1}")
        a(f"v_and_b32 v{T2}, 1, v{vLane}"); a(f"v_lshlrev_b32 v{T2}, 4, v{T2}"); a(f"v_lshl_add_u32 v{vDW+e}, v{T1}, 5, v{T2}")
        a(f"v_bfe_u32 v{T1}, v{T0}, 2, 2"); a(f"v_lshlrev_b32 v{T1}, 3, v{T1}")
        a(f"v_lshrrev_b32 v{T2}, 4, v{T0}"); a(f"v_lshl_add_u32 v{T1}, v{T2}, 2, v{T1}")
        a(f"v_and_b32 v{T2}, 3, v{T0}"); a(f"v_add_u32 v{T1}, v{T1}, v{T2}")
        a(f"v_lshl_add_u32 v{vDW+e}, v{T1}, 11, v{vDW+e}")
        a(f"s_lshl_b32 s60, s{sTN}, 8"); a(f"v_add_u32 v{vDW+e}, s60, v{vDW+e}")
    a("s_waitcnt lgkmcnt(0)")
    srd(k, SX, 6, 7, ACT_BYTES, ACT_OFF)
    a(f"s_mov_b32 s{SW+2}, {3584*2048}"); a(f"s_mov_b32 s{SW+3}, 0x20000")
    def xdma(q):
        L = [(f"s_lshl_b32 s{sOX}, s{sCX}, 10", None)]
        for i in range(4):
            L += [(f"s_add_u32 m0, s{sMXb}, {q*16384 + i*1024}", None),
                  (f"buffer_load_dwordx4 v{vDX+i}, s[{SX}:{SX+3}], s{sOX} offen lds", q)]
        L += [(f"s_add_u32 s{sCX}, s{sCX}, 1\ns_cmp_eq_u32 s{sCX}, 36\ns_cselect_b32 s{sCX}, 0, s{sCX}", None)]
        return L
    def wdma(q):
        L = [(f"v_readlane_b32 s{sOW}, v{vTab}, s{sCW}", None),
             (f"s_add_u32 s{sCW}, s{sCW}, 1\ns_cmp_eq_u32 s{sCW}, 36\ns_cselect_b32 s{sCW}, 0, s{sCW}", None),
             (f"s_bitcmp1_b32 s{sOW}, 0\ns_cselect_b32 s{SW}, s4, s8\ns_cselect_b32 s{SW+1}, s5, s9", None),
             (f"s_and_b32 s{sOW}, s{sOW}, 0xfffffffe", None)]
        for e in range(2):
            L += [(f"s_add_u32 m0, s{sMWb}, {q*8192 + e*1024}", None),
                  (f"buffer_load_dwordx4 v{vDW+e}, s[{SW}:{SW+3}], s{sOW} offen lds", q)]
        return L
    for q in range(NS):
        for t, tag in xdma(q) + wdma(q): k(t, tag)
    srd(k, SP, 6, 7, PART_BYTES, PART_OFF)
    srd(k, SF, 6, 7, FLAG_BYTES, FLAG_OFF)
    srd(k, SXR, 46, 47, 2048 * 2048)
    srd(k, SO, 10, 11, 2048 * 2048)
    a(f"s_lshl_b32 s60, s{sMH}, 13"); a(f"v_add_u32 v{vX0}, s60, v{T3}"); a(f"v_add_u32 v{vX1}, {3*16384}, v{vX0}")
    a(f"v_lshrrev_b32 v{T0}, 4, v{vLane}"); a(f"v_bfe_u32 v{T1}, v{vLane}, 2, 2"); a(f"v_lshl_add_u32 v{T1}, v{T0}, 2, v{T1}")
    a(f"v_and_b32 v{T2}, 3, v{vLane}"); a(f"v_lshlrev_b32 v{T2}, 3, v{T2}"); a(f"v_lshl_add_u32 v{T2}, v{T1}, 8, v{T2}")
    a(f"v_add_u32 v{T2}, {G2_WR}, v{T2}")
    a(f"v_and_b32 v{T1}, 7, v{T1}")
    for t in range(4):
        a(f"s_lshl_b32 s60, s{sNH}, 2"); a(f"s_add_u32 s60, s60, {t}")
        a(f"v_xor_b32 v{T0}, s60, v{T1}"); a(f"v_lshl_add_u32 v{vW+t}, v{T0}, 5, v{T2}")
    for r in range(128): a(f"v_mov_b32 v{r}, 0")
    def xread(q, par):
        vx = vX0 if q < 3 else vX1
        return [(f"ds_read_b128 {R('v', XB[par]+4*i)}, v{vx} offset:{(q%3)*16384+i*1024}", None) for i in range(8)]
    def wread(q, par):
        L = []
        for t in range(4):
            d = WB[par] + 4 * t
            L += [(f"ds_read_b64_tr_b16 v[{d}:{d+1}], v{vW+t} offset:{q*8192}", None),
                  (f"ds_read_b64_tr_b16 v[{d+2}:{d+3}], v{vW+t} offset:{q*8192+4096}", None)]
        return L
    def phase(k, q, do_dma, last):
        par = q & 1
        M = []
        for t in range(4):
            for i in range(8):
                c = (i * 4 + t) * 4
                M.append(f"{MF} {R('v', c)}, {R('v', WB[par]+4*t)}, {R('v', XB[par]+4*i)}, {R('v', c)}")
        for m in M[:NPRE]: k(m)
        if last:
            for m in M[NPRE:]: k(m)
            return
        k.wait_vm((q + 1) % NS, lgkm0=True); k.raw("s_barrier")
        n = len(M) - NPRE
        nq = (q + 1) % NS
        rd = wread(nq, par ^ 1)[:2] + xread(nq, par ^ 1) + wread(nq, par ^ 1)[2:]
        F = spread(rd, 0, n - 8, "x")
        if do_dma: F += spread(xdma(q) + wdma(q), 0, cfg.get("g2_dend", n - 1), "d")
        for t, tag in schedule(M[NPRE:], F, cfg.get("cap", 1)): k(t, tag)
    stamp(k, cfg, vP, 1)
    k.wait_vm(0); a("s_barrier")
    stamp(k, cfg, vP, 2)
    for t, _ in wread(0, 0)[:2] + xread(0, 0) + wread(0, 0)[2:]: k(t)
    a(f"s_mov_b32 s{sCnt}, 0")
    def body(k):
        k.label("L_g2_loop")
        for q in range(NS): phase(k, q, True, False)
        if cfg.get("prof"):
            k.raw(f"s_add_u32 s100, s{sCnt}, 3"); stamp(k, cfg, vP, "s100")
        k.raw(f"s_add_u32 s{sCnt}, s{sCnt}, 1"); k.raw(f"s_cmp_lt_u32 s{sCnt}, {NPH//NS - 1}"); k.raw("s_cbranch_scc1 L_g2_loop")
    k.loop(body)
    for q in range(NS): phase(k, q, False, q == NS - 1)
    stamp(k, cfg, vP, 10)
    vL16 = T3
    a(f"s_lshl_b32 s60, s{sTile}, 4"); a(f"s_add_u32 s60, s60, s{sS}"); a("s_lshl_b32 s60, s60, 2"); a(f"s_add_u32 s60, s60, s{sW}"); a("s_lshl_b32 s60, s60, 12")
    for j in range(4):
        a(f"s_cmp_eq_u32 s{sS}, {j}"); a(f"s_cbranch_scc1 L_g2_skip{j}")
        a(f"s_add_u32 s61, s60, {j*4*4*4096}")
        for n in range(4):
            c = j * 32 + n * 8; P = 128 + (j * 4 + n) * 4
            for r in range(4): a(f"v_cvt_pk_bf16_f32 v{P+r}, v{c+2*r}, v{c+2*r+1}")
            a(f"buffer_store_dwordx4 v[{P}:{P+3}], v{vL16}, s[{SP}:{SP+3}], s61 offen offset:{n*1024} sc1")
        a.label(f"L_g2_skip{j}")
    vXa, vOut = 244, 245
    a(f"v_and_b32 v{T0}, 15, v{vLane}"); a(f"v_lshlrev_b32 v{T0}, 11, v{T0}")
    a(f"v_lshrrev_b32 v{T1}, 4, v{vLane}")
    a(f"v_lshl_add_u32 v{vXa}, v{T1}, 3, v{T0}")
    a(f"v_and_b32 v{T2}, 1, v{T1}"); a(f"v_lshl_add_u32 v{vOut}, v{T2}, 5, v{T0}")
    a(f"v_lshrrev_b32 v{T2}, 1, v{T1}"); a(f"v_lshl_add_u32 v{vOut}, v{T2}, 4, v{vOut}")
    a(f"s_lshl_b32 s62, s{sTM}, 1"); a(f"s_add_u32 s62, s62, s{sMH}"); a("s_lshl_b32 s62, s62, 2"); a(f"s_add_u32 s62, s62, s{sS}"); a("s_lshl_b32 s62, s62, 16")
    a(f"s_lshl_b32 s63, s{sTN}, 1"); a(f"s_add_u32 s63, s63, s{sNH}"); a("s_lshl_b32 s63, s63, 7"); a("s_add_u32 s62, s62, s63")
    a("s_add_u32 s63, s62, 32768")
    XRr = 192
    a("s_waitcnt vmcnt(0)")
    stamp(k, cfg, vP, 11)
    a(f"s_lshl_b32 s55, s{sTile}, 2"); a(f"s_add_u32 s55, s55, s{sW}"); a("s_lshl_b32 s55, s55, 6")
    a(f"s_lshl_b32 s56, s{sS}, 2"); a("s_add_u32 s56, s56, s55")
    a(f"v_mov_b32 v{T0}, 1"); a(f"v_mov_b32 v{T1}, 0")
    a("s_mov_b64 exec, 1")
    a(f"buffer_store_dword v{T0}, v{T1}, s[{SF}:{SF+3}], s56 offen sc1")
    a("s_mov_b64 exec, -1")
    for ii in range(2):
        for t in range(4):
            r = XRr + (ii * 4 + t) * 2
            a(f"buffer_load_dwordx2 v[{r}:{r+1}], v{vXa}, s[{SXR}:{SXR+3}], s{62+ii} offen offset:{t*32}")
    a("s_mov_b32 s57, 0")
    a.label("L_g2_poll")
    a(f"buffer_load_dwordx4 v[248:251], v{T1}, s[{SF}:{SF+3}], s55 offen sc1")
    a("s_waitcnt vmcnt(0)")
    a("v_and_b32 v248, v248, v249"); a("v_and_b32 v250, v250, v251"); a("v_and_b32 v248, v248, v250")
    a("v_readfirstlane_b32 s58, v248")
    a("s_add_u32 s57, s57, 1")
    a("s_cmp_ge_u32 s57, 100000"); a("s_cbranch_scc1 L_g2_polldone")
    a("s_cmp_eq_u32 s58, 1"); a("s_cbranch_scc0 L_g2_poll")
    a.label("L_g2_polldone")
    stamp(k, cfg, vP, 12)
    a(f"s_lshl_b32 s60, s{sTile}, 2"); a(f"s_add_u32 s60, s60, s{sS}"); a("s_lshl_b32 s60, s60, 4"); a(f"s_add_u32 s60, s60, s{sW}"); a("s_lshl_b32 s60, s60, 12")
    for s in range(4):
        a(f"s_cmp_lg_u32 s{sS}, {s}"); a(f"s_cbranch_scc1 L_g2_fin{s}_skip")
        k.reset()
        Rr = s * 32
        others = [x for x in range(4) if x != s]
        for m, src in enumerate(others):
            a(f"s_add_u32 s61, s60, {src*4*4096}")
            for n in range(4):
                B = 128 + (m * 4 + n) * 4
                k(f"buffer_load_dwordx4 v[{B}:{B+3}], v{vL16}, s[{SP}:{SP+3}], s61 offen offset:{n*1024} sc1")
        def addp(c, p, n):
            t0, t1 = 208 + 2 * (n % 8), 209 + 2 * (n % 8)
            k(f"v_lshlrev_b32 v{t0}, 16, v{p}"); k(f"v_and_b32 v{t1}, 0xffff0000, v{p}")
            k(f"v_add_f32 v{c}, v{c}, v{t0}"); k(f"v_add_f32 v{c+1}, v{c+1}, v{t1}")
        for r in range(16): addp(Rr + 2 * r, XRr + r, r)
        for m in range(3):
            for r in range(16): addp(Rr + 2 * r, 128 + m * 16 + r, r)
        for n in range(4):
            c = Rr + n * 8; P = 176 + 4 * n
            for r in range(4): k(f"v_cvt_pk_bf16_f32 v{P+r}, v{c+2*r}, v{c+2*r+1}")
            k(f"v_permlane16_swap_b32 v{P}, v{P+2}"); k(f"v_permlane16_swap_b32 v{P+1}, v{P+3}")
            k(f"buffer_store_dwordx4 v[{P}:{P+3}], v{vOut}, s[{SO}:{SO+3}], s{62 + n//2} offen offset:{64*(n%2)}")
        a("s_branch L_g2_done")
        a.label(f"L_g2_fin{s}_skip")
    a.label("L_g2_done")
    stamp(k, cfg, vP, 13)
    prof_store(k, cfg, vP, T0, sW, 1)
    a.label("L_g2_end")
    a("s_endpgm")

def build(cfg, launches=("ln", "g1", "g2")):
    a = Asm()
    gen_ln(a); gen_g1(a, cfg); gen_g2(a, cfg)
    body = a.finalize()
    hdr = []
    L = {"ln": "; @launch kernel=ln_kernel grid=(256,1,1) block=(256,1,1) lds=256",
         "g1": f"; @launch kernel=g1_kernel grid=(256,1,1) block=(256,1,1) lds={G1_LDS}",
         "g2": f"; @launch kernel={KN} grid=(256,1,1) block=(256,1,1) lds={G2_LDS}"}
    for l in launches: hdr.append(L[l])
    hdr += ['.amdgcn_target "amdgcn-amd-amdhsa--gfx950"', ".text"]
    tail = ['.section .rodata,"a"', ".p2align 6", descriptor("ln_kernel", 104, 32), ".p2align 6", descriptor("g1_kernel", 512, 102, 256),
            ".p2align 6", descriptor(KN, 256, 102)]
    return "\n".join(hdr) + "\n" + body + "\n" + "\n".join(tail) + "\n"

if __name__ == "__main__":
    out = sys.argv[1]
    cfg = {}
    launches = ("ln", "g1", "g2")
    for kv in sys.argv[2:]:
        kk, v = kv.split("=")
        if kk == "launches": launches = v.split(",")
        else: cfg[kk] = int(v)
    open(out, "w").write(build(cfg, launches))
    print("wrote", out)
```

```python
import sys, os, math
sys.path.insert(0, os.path.dirname(__file__))
from asmlib import Asm
from fw import *
import gen2
from gen2 import xlane_reduce, wg_decode

KN = "parallel_sum__sliding_local_dilated__glu_gated_glu__prompt_kernel"
XN_OFF = 0
ACT_OFF = 0x400000
MFS = 144 * 1024
ACT_BYTES = 128 * MFS
PART_OFF = 0x2000000
PART_BYTES = 64 * 4 * 4 * 4 * 4096
FLAG_OFF = 0x6000000
GF_OFF = 0x4000
FLAG_BYTES = GF_OFF + 32 * 1024
PROF_OFF = 0x7000000
LOG2E = 1.4426950408889634
MF = "v_mfma_f32_16x16x32_bf16"
SPIN = 100000

pX, pQKV, pWO, pG, pU, pD, pOUT, pWS = 4, 6, 8, 12, 14, 16, 18, 20
SX, SQ, SG, SU, SA, SF, SW2, SP, SXR, SO = 24, 28, 32, 36, 40, 44, 48, 52, 56, 60
sW, sMT, sS, sJ, sNT, sMH, sNH, sODD = 64, 65, 66, 67, 68, 69, 70, 71
cX, cH, cQ, cG, sCnt, sGF, sSlow, sTile = 72, 73, 74, 75, 76, 77, 78, 79
sC0, sC1 = 80, 82
sT0, sT1, sT2, sT3 = 84, 85, 86, 87
sB0 = 88
sCur, sOX, sOW, sMXb, sMWb = 92, 93, 94, 95, 22
sFl = 23
vD = 192
vX, vWa, vWb, vWc, vHX = 205, 206, 207, 208, 209
T0, T1, T2, T3, T4, T5 = 210, 211, 212, 213, 214, 215
vLane = 216
vPFW = 217
vST, vL, vSS, vPoll, vXcc = 232, 233, 237, 238, 239
vDX2, vDW2, vTabX, vTabW, vX0, vX1, vW, vL16, vP = 240, 244, 246, 247, 248, 249, 250, 254, 255
HACC, XB, WB, HXB = 128, 136, 200, 248
XR, HR = 0, 65536
QR = HR + 4096
GR = QR + 4 * 7168
UR = GR + 4 * 7168
LDS = UR + 4 * 7168
NS = 6
G2_WR = NS * 16384
EXCH = G2_WR + NS * 8192

def stamp(k, cfg, idx, st=96):
    if not cfg.get("prof"): return
    k.raw(f"s_memrealtime s[{st}:{st+1}]"); k.raw(f"s_memtime s[{st+2}:{st+3}]")
    k.smem_wait()
    if isinstance(idx, int):
        k.raw(f"v_writelane_b32 v{vP}, s{st}, {idx}"); k.raw(f"v_writelane_b32 v{vP}, s{st+2}, {32+idx}")
    else:
        k.raw(f"s_lshl_b64 exec, 1, {idx}"); k.raw(f"v_mov_b32 v{vP}, s{st}"); k.raw("s_lshl_b64 exec, exec, 32")
        k.raw(f"v_mov_b32 v{vP}, s{st+2}"); k.raw("s_mov_b64 exec, -1")

def prof_store(k, cfg, st=96):
    if not cfg.get("prof"): return
    k.wait_vm0(force=True)
    stamp(k, cfg, 31, st)
    srd(k, st, pWS, pWS + 1, 0x100000, PROF_OFF)
    k.raw(f"v_lshrrev_b32 v{T0}, 2, v{vL16}")
    k.raw(f"s_lshl_b32 s{st+4}, s2, 3"); k.raw(f"s_add_u32 s{st+4}, s{st+4}, s{sW}"); k.raw(f"s_lshl_b32 s{st+4}, s{st+4}, 8")
    k.raw(f"buffer_store_dword v{vP}, v{T0}, s[{st}:{st+3}], s{st+4} offen")

def gen_ln(a, cfg):
    gen2.FLAG_BYTES = FLAG_BYTES
    gen2.gen_ln(a, nflag=FLAG_BYTES // 4096, lnb=cfg.get('lnb', 3))

def acc(t, i):
    f = t * 8 + i
    return ("v", 4 * f) if f < 48 else ("a", 4 * (f - 48))

def kperm(a, p, o, t):
    a(f"v_bfe_u32 v{o}, v{p}, 2, 2"); a(f"v_lshlrev_b32 v{o}, 3, v{o}")
    a(f"v_lshrrev_b32 v{t}, 4, v{p}"); a(f"v_lshl_add_u32 v{o}, v{t}, 2, v{o}")
    a(f"v_and_b32 v{t}, 3, v{p}"); a(f"v_add_u32 v{o}, v{o}, v{t}")

DUTY = {0: [("G", d) for d in range(4)] + [("X", f) for f in range(0, 4)],
        1: [("G", d) for d in range(4, 7)] + [("X", f) for f in range(4, 10)],
        2: [("Q", d) for d in range(6)] + [("H", 0)] + [("X", f) for f in range(10, 16)],
        3: []}

def glu_unit(F, tmp, store):
    L = []; G = []; U = []; n = 0
    for (gk, gr), (uk, ur) in F:
        if gk == "a":
            for j in range(4): L.append(f"v_accvgpr_read_b32 v{tmp+n+j}, a{gr+j}")
            G.append(tmp + n); n += 4
        else: G.append(gr)
    for g_ in G:
        for j in (0, 2): L.append(f"v_pk_mul_f32 v[{g_+j}:{g_+j+1}], v[{g_+j}:{g_+j+1}], s[{sC0}:{sC0+1}]")
    for g_ in G:
        for j in range(4): L.append(f"v_exp_f32 v{g_+j}, v{g_+j}")
    for (gk, gr), (uk, ur) in F:
        if uk == "a":
            for j in range(4): L.append(f"v_accvgpr_read_b32 v{tmp+n+j}, a{ur+j}")
            U.append(tmp + n); n += 4
        else: U.append(ur)
    for g_ in G:
        for j in (0, 2): L.append(f"v_pk_add_f32 v[{g_+j}:{g_+j+1}], v[{g_+j}:{g_+j+1}], s[{sC1}:{sC1+1}]")
    for g_ in G:
        for j in range(4): L.append(f"v_rcp_f32 v{g_+j}, v{g_+j}")
    for g_, u in zip(G, U):
        for j in (0, 2): L.append(f"v_pk_mul_f32 v[{g_+j}:{g_+j+1}], v[{g_+j}:{g_+j+1}], v[{u+j}:{u+j+1}]")
    P = G[0]
    L.append(f"v_cvt_pk_bf16_f32 v{P}, v{G[0]}, v{G[0]+1}"); L.append(f"v_cvt_pk_bf16_f32 v{P+1}, v{G[0]+2}, v{G[0]+3}")
    L.append(f"v_cvt_pk_bf16_f32 v{P+2}, v{G[1]}, v{G[1]+1}"); L.append(f"v_cvt_pk_bf16_f32 v{P+3}, v{G[1]+2}, v{G[1]+3}")
    L.append(f"v_permlane16_swap_b32 v{P}, v{P+2}")
    L.append(f"v_permlane16_swap_b32 v{P+1}, v{P+3}")
    return [(x, None) for x in L] + store(P)

def st_full(i, sreg, slot, tag):
    def store(P):
        return [(f"s_add_u32 s{sT0}, s{sreg}, {i*MFS}", None),
                (f"buffer_store_dwordx4 v[{P}:{P+3}], v{vST}, s[{SA}:{SA+3}], s{sT0} offen", tag),
                (f"ds_write_b128 v{vL + i//2}, v[{P}:{P+3}] offset:{slot*16384 + (i&1)*1024}", None)]
    return store

def interleave(*streams):
    out = []
    n = max(len(s) for s in streams)
    for j in range(n):
        for s in streams:
            if j < len(s): out.append(s[j])
    return out

def set_flag(k, stage, tag, name):
    a = k.raw
    k.wait_vm(tag)
    a(f"s_cmp_eq_u32 s{sSlow}, 0"); a(f"s_cbranch_scc1 L_fl_{name}")
    a("buffer_wbl2 sc1"); a("s_waitcnt vmcnt(0)")
    k.label(f"L_fl_{name}")
    a("s_mov_b64 exec, 1")
    k(f"buffer_store_dword v{vXcc}, v{vL16}, s[{SF}:{SF+3}], s{sFl} offen offset:{stage*256}")
    k(f"buffer_store_dword v{vXcc}, v{vL16}, s[{SF}:{SF+3}], s{sFl} offen offset:{stage*256+128} sc1")
    a("s_mov_b64 exec, -1")

def poll_issue(stage):
    return [(f"v_lshrrev_b32 v{vPoll}, 2, v{vL16}", None),
            (f"buffer_load_dword v{vPoll}, v{vPoll}, s[{SF}:{SF+3}], s{sGF} offen offset:{stage*256} sc1", "poll")]

def poll_check(name):
    return [(f"v_cmp_ne_u32 vcc, 0, v{vPoll}\ns_or_b32 s{sT1}, vcc_lo, vcc_hi\ns_cmp_eq_u32 s{sT1}, -1\ns_cbranch_scc0 L_slow_{name}\n@L_back_{name}", None)]

def poll_slow(a, stage, name):
    a.label(f"L_slow_{name}")
    a(f"s_mov_b32 s{sT2}, 0")
    a.label(f"L_slowl_{name}")
    a(f"v_lshrrev_b32 v{vPoll}, 2, v{vL16}")
    a(f"buffer_load_dword v{vPoll}, v{vPoll}, s[{SF}:{SF+3}], s{sGF} offen offset:{stage*256} sc1")
    a("s_waitcnt vmcnt(0)")
    a(f"v_cmp_ne_u32 vcc, 0, v{vPoll}"); a(f"s_or_b32 s{sT1}, vcc_lo, vcc_hi")
    a(f"s_add_u32 s{sT2}, s{sT2}, 1"); a(f"s_cmp_ge_u32 s{sT2}, {SPIN}"); a(f"s_cbranch_scc1 L_back_{name}")
    a(f"s_cmp_eq_u32 s{sT1}, -1"); a(f"s_cbranch_scc0 L_slowl_{name}")
    a(f"s_branch L_back_{name}")

def emit(k, items):
    for t, tag in items:
        for x in t.split("\n"):
            if x.startswith("@"): k.label(x[1:])
            else: k(x, tag)

def gen_main(a, cfg):
    k = K(a)
    NPRE = cfg.get("g1_npre", 2)
    PFD = cfg.get("pfd", 4)
    NP0 = cfg.get("np0", 3)
    header(a, KN)
    a("s_cmp_ge_u32 s2, 256"); a("s_cbranch_scc1 L_end")
    a("s_load_dwordx16 s[4:19], s[0:1], 0")
    a("s_load_dwordx2 s[20:21], s[0:1], 72")
    if cfg.get("prof"): a(f"v_mov_b32 v{vP}, 0")
    stamp(k, cfg, 0)
    a(f"v_and_b32 v{vLane}, 63, v0")
    a(f"v_lshrrev_b32 v{T0}, 6, v0")
    a(f"v_readfirstlane_b32 s{sW}, v{T0}")
    wg_decode(k, sMT, sS, sJ, sT0)
    a(f"s_lshl_b32 s{sNT}, s{sS}, 3"); a(f"s_add_u32 s{sNT}, s{sNT}, s{sJ}")
    a(f"s_and_b32 s{sODD}, s{sJ}, 1")
    a(f"s_and_b32 s{sMH}, s{sW}, 1"); a(f"s_lshr_b32 s{sNH}, s{sW}, 1")
    a(f"v_lshlrev_b32 v{vL16}, 4, v{vLane}")
    a(f"s_lshl_b32 s{cX}, s{sMT}, 19")
    a(f"s_sub_u32 s{cH}, s{cX}, 32768"); a(f"s_cmp_eq_u32 s{sMT}, 0"); a(f"s_cselect_b32 s{cH}, 0x40000000, s{cH}")
    a(f"s_lshl_b32 s{cQ}, s{sNT}, 6"); a(f"s_mul_i32 s{cG}, s{sNT}, 224")
    a(f"s_lshl_b32 s{sGF}, s{sMT}, 2"); a(f"s_add_u32 s{sGF}, s{sGF}, s{sS}"); a(f"s_lshl_b32 s{sGF}, s{sGF}, 10"); a(f"s_add_u32 s{sGF}, s{sGF}, {GF_OFF}")
    a(f"s_lshl_b32 s{sFl}, s{sJ}, 2"); a(f"s_add_u32 s{sFl}, s{sFl}, s{sW}"); a(f"s_lshl_b32 s{sFl}, s{sFl}, 2"); a(f"s_add_u32 s{sFl}, s{sFl}, s{sGF}")
    a(f"s_cmp_eq_u32 s{sW}, 1"); a("s_cbranch_scc1 L_w1")
    a(f"s_cmp_eq_u32 s{sW}, 2"); a("s_cbranch_scc1 L_w2")
    a(f"s_cmp_eq_u32 s{sW}, 3"); a("s_cbranch_scc1 L_w3")

    def wreg(t, par): return WB + 4 * t if t < 8 else WB + 32 + 4 * (t - 8) + 8 * par
    XBUF = [XB, XB + 32]
    def wsrc(nh, t):
        if nh == 0:
            if t < 6: return (vWa if t % 2 == 0 else vWb, t * 32, 192)
            return (vWc, (t % 2) * 32 + (UR - GR if t >= 8 else 0), 224)
        u = t >= 5; tt = t % 5
        return (vWa if tt < 4 else vWb, (tt * 32 if tt < 4 else 0) + (UR - GR if u else 0), 224)
    def wread(nh, t, q, par):
        v, o, st = wsrc(nh, t); d = wreg(t, par); o += q * 7168
        return [(f"ds_read_b64_tr_b16 a[{d}:{d+1}], v{v} offset:{o}", None),
                (f"ds_read_b64_tr_b16 a[{d+2}:{d+3}], v{v} offset:{o+16*st}", None)]
    def xread(nh, q, par):
        L = [(f"ds_read_b128 {R('a', XBUF[par]+4*i)}, v{vX} offset:{q*16384+i*1024}", None) for i in range(8)]
        if nh == 0: L.append((f"ds_read_b128 {R('a', HXB+4*par)}, v{vHX} offset:{q*1024}", None))
        return L
    def dma(w, q):
        L = []; used = set()
        for n, (kind, d) in enumerate(DUTY[w]):
            v = vD + n
            if kind == "X":
                L += [(f"s_mov_b32 m0, {XR + q*16384 + d*1024}", None), (f"buffer_load_dwordx4 v{v}, s[{SX}:{SX+3}], s{cX} offen lds", q)]
            elif kind == "H":
                L += [(f"s_mov_b32 m0, {HR + q*1024}", None), (f"buffer_load_dwordx4 v{vL16}, s[{SX}:{SX+3}], s{cH} offen lds", q)]
            elif kind == "Q":
                L += [(f"s_mov_b32 m0, {QR + q*7168 + d*1024}", None), (f"buffer_load_dwordx4 v{v}, s[{SQ}:{SQ+3}], s{cQ} offen lds", q)]
            else:
                L += [(f"s_mov_b32 m0, {GR + q*7168 + d*1024}", None), (f"buffer_load_dwordx4 v{v}, s[{SG}:{SG+3}], s{cG} offen lds", q),
                      (f"s_mov_b32 m0, {UR + q*7168 + d*1024}", None), (f"buffer_load_dwordx4 v{v}, s[{SU}:{SU+3}], s{cG} offen lds", q)]
            nxt = DUTY[w][n + 1][0] if n + 1 < len(DUTY[w]) else None
            if nxt != kind:
                c, st = {"X": (cX, 1024), "H": (cH, 1024), "Q": (cQ, 32 * 6144), "G": (cG, 32 * 7168)}[kind]
                L.append((f"s_add_u32 s{c}, s{c}, {st}", None))
        return L
    def pf():
        d = vD + 4
        return [(f"buffer_load_dword v{d}, v{vD}, s[{SQ}:{SQ+3}], s{cQ} offen", "pf"), (f"s_add_u32 s{cQ}, s{cQ}, {32*6144}", None),
                (f"buffer_load_dword v{d+1}, v{vD+1}, s[{SG}:{SG+3}], s{cG} offen", "pf"),
                (f"buffer_load_dword v{d+2}, v{vD+1}, s[{SU}:{SU+3}], s{cG} offen", "pf"), (f"s_add_u32 s{cG}, s{cG}, {32*7168}", None),
                (f"buffer_load_dword v{d+3}, v{vD+2}, s[{SX}:{SX+3}], s{cX} offen", "pf"), (f"s_add_u32 s{cX}, s{cX}, 1024", None)]
    GL = cfg.get("pfgl", 7)
    def pfb(w2=True):
        d = vD + 4
        L = [(f"buffer_load_dword v{d}, v{vD}, s[{SQ}:{SQ+3}], s{cQ} offen", "pf"), (f"s_add_u32 s{cQ}, s{cQ}, {128*6144}", None),
             (f"buffer_load_dword v{d+1}, v{vD+1}, s[{SG}:{SG+3}], s{cG} offen", "pf"),
             (f"buffer_load_dword v{d+2}, v{vD+1}, s[{SU}:{SU+3}], s{cG} offen", "pf"), (f"s_add_u32 s{cG}, s{cG}, {128*7168}", None)]
        if w2: L += pfw2()
        return L
    def pfw2():
        return [(f"buffer_load_dword v{vD+7}, v{vD+2}, s[{SW2}:{SW2+3}], s{cX} offen", "pf"), (f"s_add_u32 s{cX}, s{cX}, 4864", None)]
    def pfwo():
        return [(f"buffer_load_dword v{vD+7}, v{vPFW}, s[{SO}:{SO+3}], s{cH} offen", "pf")]
    class KP:
        pass
    def emit_nt(items):
        for t, tag in items:
            if tag == "pf": k.raw(t)
            else: k(t, tag)

    def w2dma(q, lane):
        L = [(f"v_readlane_b32 s{sOW}, v{vTabW}, {lane}", None),
             (f"s_bitcmp1_b32 s{sOW}, 0\ns_cselect_b32 s{SW2}, s{pWO}, s{pD}\ns_cselect_b32 s{SW2+1}, s{pWO+1}, s{pD+1}", None),
             (f"s_and_b32 s{sOW}, s{sOW}, 0xfffffffe", None)]
        for e in range(2):
            L += [(f"s_add_u32 m0, s{sMWb}, {q*8192 + e*1024}", None),
                  (f"buffer_load_dwordx4 v{vDW2+e}, s[{SW2}:{SW2+3}], s{sOW} offen lds", ("g2", q))]
        return L
    def x2dma(q, lane):
        L = [(f"v_readlane_b32 s{sOX}, v{vTabX}, {lane}", None)]
        for i in range(4):
            L += [(f"s_add_u32 m0, s{sMXb}, {q*16384 + i*1024}", None),
                  (f"buffer_load_dwordx4 v{vDX2+i}, s[{SX2}:{SX2+3}], s{sOX} offen sc1 lds", ("g2", q))]
        return L
    SX2 = SA

    def phase(k, w, q, fill, first=False, last=False):
        nh = w >> 1
        hsel = (2, 4, None, None)[w]
        par = q & 1
        M = []; free = {}
        for t in range(10):
            sw = nh == 0 and t in (4, 5)
            for i in range(8):
                kd, c = acc(t, i)
                A_, B_ = R('a', wreg(t, par)), R('a', XBUF[par] + 4 * i)
                if sw: A_, B_ = B_, A_
                M.append(f"{MF} {R(kd, c)}, {A_}, {B_}, {'0' if first else R(kd, c)}")
            if hsel is not None and t in (hsel, hsel + 1):
                c = HACC + 4 * (t - hsel)
                A_, B_ = R('a', wreg(t, par)), R('a', HXB + 4 * par)
                if sw: A_, B_ = B_, A_
                M.append(f"{MF} {R('a', c)}, {A_}, {B_}, {'0' if first else R('a', c)}")
            free[t] = len(M)
        for m in M[:NPRE]: k(m)
        k.wait_vm((q + 1) % 4, lgkm0=True); k.raw("s_barrier")
        n = len(M) - NPRE
        F = []
        if not last:
            F = spread(xread(nh, (q + 1) % 4, par ^ 1), 0, n - 14, "x")
            wl, we = [], []
            for t in (8, 9, 0, 1, 2, 3, 4, 5, 6, 7):
                wl += wread(nh, t, (q + 1) % 4, par ^ 1); e = 0 if t >= 8 else free[t] - NPRE; we += [e, e]
            F += spread(wl, 1, n - 12, "w", we)
        F += spread(fill, 0, min(n - 1, cfg.get("g1_dend", n - 1)), "d")
        for t, tag in schedule(M[NPRE:], F, cfg.get("cap", 1)):
            if tag == "pf":
                for x in t.split("\n"):
                    if x.startswith("@"): k.label(x[1:])
                    else: k.raw(x)
            else: emit(k, [(t, tag)])

    def common_setup():
        L = vLane
        srd(k, SA, pWS, pWS + 1, ACT_BYTES, ACT_OFF)
        srd(k, SP, pWS, pWS + 1, PART_BYTES, PART_OFF)
        srd(k, SXR, pX, pX + 1, 2048 * 2048)
        srd(k, SO, pOUT, pOUT + 1, 2048 * 2048)
        a(f"s_mov_b32 s{SW2}, s{pD}"); a(f"s_mov_b32 s{SW2+1}, s{pD+1}")
        a(f"s_mov_b32 s{SW2+2}, {3584*2048}"); a(f"s_mov_b32 s{SW2+3}, 0x20000")
        a(f"s_mov_b32 s{sC0}, {f2u(-LOG2E)}"); a(f"s_mov_b32 s{sC0+1}, {f2u(-LOG2E)}")
        a(f"s_mov_b32 s{sC1}, 1.0"); a(f"s_mov_b32 s{sC1+1}, 1.0")
        a(f"s_lshl_b32 s{sTile}, s{sMT}, 3"); a(f"s_add_u32 s{sTile}, s{sTile}, s{sJ}")
        vI, vG = T4, T5
        a(f"v_and_b32 v{vI}, 15, v{L}"); a(f"v_lshrrev_b32 v{vG}, 4, v{L}")
        a(f"v_and_b32 v{T0}, 1, v{vG}"); a(f"v_lshrrev_b32 v{T1}, 1, v{vG}"); a(f"v_lshl_add_u32 v{T2}, v{T0}, 1, v{T1}")
        a(f"v_lshlrev_b32 v{vST}, 4, v{vI}"); a(f"v_lshl_add_u32 v{vST}, v{T2}, 8, v{vST}")
        a(f"v_mul_u32_u24 v{vSS}, {MFS}, v{T0}"); a(f"v_lshl_add_u32 v{vSS}, v{T1}, 8, v{vSS}"); a(f"v_lshl_add_u32 v{vSS}, v{vI}, 4, v{vSS}")
        for jj in range(4):
            a(f"s_sub_u32 s{sT0}, {jj}, s{sS}"); a(f"s_and_b32 s{sT0}, s{sT0}, 3"); a(f"s_lshl_b32 s{sT1}, s{sMH}, 2"); a(f"s_add_u32 s{sT0}, s{sT0}, s{sT1}")
            a(f"s_lshl_b32 s{sT0}, s{sT0}, 11"); a(f"v_add_u32 v{vL+jj}, s{sT0}, v{vST}")
        a(f"s_lshl_b32 s{sT0}, s{sMT}, 1"); a(f"s_add_u32 s{sT0}, s{sT0}, s{sMH}"); a(f"s_mul_i32 s{sT0}, s{sT0}, {8*MFS}")
        a(f"s_lshr_b32 s{sT1}, s{sJ}, 1"); a(f"s_mul_i32 s{sT1}, s{sT1}, 9"); a(f"s_mul_i32 s{sT2}, s{sS}, 36"); a(f"s_add_u32 s{sT1}, s{sT1}, s{sT2}")
        a(f"s_lshl_b32 s{sT1}, s{sT1}, 10"); a(f"s_add_u32 s{sT0}, s{sT0}, s{sT1}")
        a(f"s_mul_i32 s{sT1}, s{sODD}, 3072"); a(f"s_add_u32 s{sT1}, s{sT1}, 2048")
        a(f"s_mul_i32 s{sT2}, s{sODD}, 6144"); a(f"s_add_u32 s{sT2}, s{sT2}, 1024")
        a(f"s_cmp_eq_u32 s{sNH}, 1"); a(f"s_cselect_b32 s{sB0}, s{sT1}, s{sT2}"); a(f"s_add_u32 s{sB0}, s{sB0}, s{sT0}")
        a(f"s_add_u32 s{sT1}, s{sT1}, 1024"); a(f"s_lshl_b32 s{sT2}, s{sODD}, 13")
        a(f"s_cmp_eq_u32 s{sNH}, 1"); a(f"s_cselect_b32 s{sB0+1}, s{sT1}, s{sT2}"); a(f"s_add_u32 s{sB0+1}, s{sB0+1}, s{sT0}")
        a(f"s_lshl_b32 s{sT1}, s{sODD}, 9"); a(f"s_add_u32 s{sB0+2}, s{sT0}, s{sT1}"); a(f"s_add_u32 s{sB0+2}, s{sB0+2}, 4096")
        a(f"s_mul_i32 s{sT0}, s{sMT}, {16*MFS}"); a(f"s_mul_i32 s{sT1}, s{sS}, {36*1024}"); a(f"s_add_u32 s{sT0}, s{sT0}, s{sT1}")
        for i in range(4):
            a(f"s_lshl_b32 s{sT1}, s{sW}, 2"); a(f"s_add_u32 s{sT1}, s{sT1}, {i}")
            a(f"s_lshl_b32 s{sT2}, s{sS}, 1"); a(f"s_add_u32 s{sT2}, s{sT2}, s{sT1}"); a(f"s_and_b32 s{sT2}, s{sT2}, 7")
            a(f"s_and_b32 s{sT1}, s{sT1}, 8"); a(f"s_or_b32 s{sT1}, s{sT1}, s{sT2}")
            a(f"s_mul_i32 s{sT1}, s{sT1}, {MFS}"); a(f"s_add_u32 s{sT1}, s{sT1}, s{sT0}")
            a(f"v_add_u32 v{vDX2+i}, s{sT1}, v{vL16}")
        a(f"s_lshl_b32 s{sMXb}, s{sW}, 12")
        a(f"s_lshl_b32 s{sMWb}, s{sW}, 11"); a(f"s_add_u32 s{sMWb}, s{sMWb}, {G2_WR}")
        a(f"v_subrev_u32 v{T0}, 2, v{L}"); a(f"v_subrev_u32 v{T1}, 16, v{L}")
        a(f"v_cmp_le_u32 vcc, 18, v{L}"); a(f"v_cndmask_b32 v{T0}, v{T0}, v{T1}, vcc"); a(f"v_lshrrev_b32 v{T0}, 1, v{T0}")
        a(f"v_cndmask_b32 v{T1}, 0, 2, vcc"); a(f"v_and_b32 v{T2}, 1, v{L}"); a(f"v_add_u32 v{T1}, v{T1}, v{T2}")
        a(f"v_cmp_gt_u32 vcc, 4, v{L}"); a(f"v_cndmask_b32 v{T0}, v{T0}, 0, vcc"); a(f"v_cndmask_b32 v{T1}, v{T1}, v{L}, vcc")
        a(f"v_add_u32 v{T0}, s{sJ}, v{T0}"); a(f"v_and_b32 v{T0}, 7, v{T0}")
        a(f"v_and_b32 v{T2}, 1, v{T0}"); a(f"v_lshl_add_u32 v{T1}, v{T2}, 2, v{T1}"); a(f"v_lshlrev_b32 v{T1}, 2, v{T1}")
        a(f"s_mov_b32 s{sT0}, 0x86750312"); a(f"v_lshrrev_b32 v{T1}, v{T1}, s{sT0}"); a(f"v_and_b32 v{T1}, 15, v{T1}")
        a(f"v_lshrrev_b32 v{T0}, 1, v{T0}")
        a(f"s_lshr_b32 s{sT0}, s{sJ}, 1"); a(f"v_add_u32 v{T2}, s{sT0}, v{L}"); a(f"v_and_b32 v{T2}, 3, v{T2}")
        a(f"v_cmp_le_u32 vcc, 32, v{L}"); a(f"v_cndmask_b32 v{T0}, v{T0}, v{T2}, vcc"); a(f"v_cndmask_b32 v{T1}, v{T1}, 4, vcc")
        a(f"v_mad_u32_u24 v{vTabX}, v{T0}, 9, v{T1}"); a(f"v_lshlrev_b32 v{vTabX}, 10, v{vTabX}")
        a(f"s_lshl_b32 s{sT0}, s{sS}, 2"); a(f"v_add_u32 v{T0}, s{sT0}, v{T0}")
        a(f"v_mul_u32_u24 v{vTabW}, 224, v{T0}"); a(f"v_lshl_add_u32 v{vTabW}, v{T1}, 5, v{vTabW}"); a(f"v_subrev_u32 v{vTabW}, 32, v{vTabW}")
        a(f"v_lshlrev_b32 v{vTabW}, 11, v{vTabW}")
        a(f"v_lshrrev_b32 v{T2}, 3, v{T1}"); a(f"v_lshl_add_u32 v{T2}, v{T0}, 1, v{T2}")
        a(f"v_lshlrev_b32 v{T2}, 16, v{T2}"); a(f"v_or_b32 v{T2}, 1, v{T2}")
        a(f"v_and_b32 v{T1}, 7, v{T1}"); a(f"v_cmp_eq_u32 vcc, 0, v{T1}")
        a(f"v_cndmask_b32 v{vTabW}, v{vTabW}, v{T2}, vcc")
        for e in range(2):
            a(f"s_lshl_b32 s{sT0}, s{sW}, 3"); a(f"s_add_u32 s{sT0}, s{sT0}, {4*e}")
            a(f"v_add_u32 v{T0}, s{sT0}, v{vG}")
            a(f"v_lshrrev_b32 v{T1}, 1, v{L}"); a(f"v_xor_b32 v{T1}, v{T1}, v{T0}"); a(f"v_and_b32 v{T1}, 7, v{T1}")
            a(f"v_and_b32 v{T2}, 1, v{L}"); a(f"v_lshlrev_b32 v{T2}, 4, v{T2}"); a(f"v_lshl_add_u32 v{vDW2+e}, v{T1}, 5, v{T2}")
            kperm(a, T0, T1, T2)
            a(f"v_lshl_add_u32 v{vDW2+e}, v{T1}, 11, v{vDW2+e}")
            a(f"s_lshl_b32 s{sT0}, s{sJ}, 8"); a(f"v_add_u32 v{vDW2+e}, s{sT0}, v{vDW2+e}")
        a(f"s_lshl_b32 s{sT0}, s{sMH}, 13"); a(f"v_add_u32 v{vX0}, s{sT0}, v{vL16}"); a(f"v_add_u32 v{vX1}, {3*16384}, v{vX0}")
        a(f"v_bfe_u32 v{T1}, v{L}, 2, 2"); a(f"v_lshl_add_u32 v{T1}, v{vG}, 2, v{T1}")
        a(f"v_and_b32 v{T2}, 3, v{L}"); a(f"v_lshlrev_b32 v{T2}, 3, v{T2}"); a(f"v_lshl_add_u32 v{T2}, v{T1}, 8, v{T2}")
        a(f"v_add_u32 v{T2}, {G2_WR}, v{T2}")
        a(f"v_and_b32 v{T1}, 7, v{T1}")
        for t in range(4):
            a(f"s_lshl_b32 s{sT0}, s{sNH}, 2"); a(f"s_add_u32 s{sT0}, s{sT0}, {t}")
            a(f"v_xor_b32 v{T0}, s{sT0}, v{T1}"); a(f"v_lshl_add_u32 v{vW+t}, v{T0}, 5, v{T2}")
        a(f"v_lshlrev_b32 v{vPFW}, {6 if cfg.get('pw', 0) else 7}, v{L}")
        a(f"s_getreg_b32 s{sT0}, hwreg(HW_REG_XCC_ID, 0, 4)"); a(f"s_add_u32 s{sT0}, s{sT0}, 1"); a(f"v_mov_b32 v{vXcc}, s{sT0}")

    tails = {}
    for w in range(4):
        nh = w >> 1; mh = w & 1
        if w: a.label(f"L_w{w}")
        k.reset()
        L = vLane
        for n, (kind, d) in enumerate(DUTY[w]):
            v = vD + n
            if kind == "X": a(f"v_add_u32 v{v}, {d*32768}, v{vL16}" if d else f"v_mov_b32 v{v}, v{vL16}")
            elif kind == "Q":
                a(f"v_add_u32 v{T0}, {64*d}, v{L}")
                a(f"v_mul_u32_u24 v{T1}, 5462, v{T0}"); a(f"v_lshrrev_b32 v{T1}, 16, v{T1}")
                a(f"v_mul_u32_u24 v{T2}, 12, v{T1}"); a(f"v_sub_u32 v{T2}, v{T0}, v{T2}")
                a(f"v_lshrrev_b32 v{T3}, 2, v{T2}"); a(f"v_lshlrev_b32 v{v}, 11, v{T3}")
                a(f"v_lshrrev_b32 v{T3}, 1, v{T1}"); a(f"v_and_b32 v{T3}, 2, v{T3}")
                a(f"v_xor_b32 v{T2}, v{T2}, v{T3}"); a(f"v_and_b32 v{T2}, 3, v{T2}")
                a(f"v_lshl_add_u32 v{v}, v{T2}, 4, v{v}")
                kperm(a, T1, T2, T3)
                a(f"v_mul_u32_u24 v{T2}, 6144, v{T2}"); a(f"v_add_u32 v{v}, v{v}, v{T2}")
            elif kind == "G":
                a(f"v_add_u32 v{T0}, {64*d}, v{L}")
                a(f"v_mul_u32_u24 v{T1}, 4682, v{T0}"); a(f"v_lshrrev_b32 v{T1}, 16, v{T1}")
                a(f"v_mul_u32_u24 v{T2}, 14, v{T1}"); a(f"v_sub_u32 v{T2}, v{T0}, v{T2}")
                a(f"v_lshlrev_b32 v{v}, 4, v{T2}")
                kperm(a, T1, T2, T3)
                a(f"v_mul_u32_u24 v{T2}, 7168, v{T2}"); a(f"v_add_u32 v{v}, v{v}, v{T2}")
        if w == 3 and cfg.get("pf", 2) == 2:
            a(f"v_min_u32 v{T0}, {(3072 >> GL) - 1}, v{L}"); a(f"v_lshlrev_b32 v{vD}, {GL}, v{T0}")
            a(f"v_min_u32 v{T0}, {(3584 >> GL) - 1}, v{L}"); a(f"v_lshlrev_b32 v{vD+1}, {GL}, v{T0}")
            a(f"v_min_u32 v{T0}, 37, v{L}"); a(f"v_lshlrev_b32 v{vD+2}, 7, v{T0}")
            a(f"s_bfe_u32 s{sCur}, s2, {3 | (2 << 16)}")
            a(f"s_add_u32 s{sT0}, s2, {256 * cfg.get('pf0', max(1, cfg.get('lnb', 3)))}")
            a(f"s_mul_i32 s{cQ}, s{sT0}, 3072"); a(f"s_mul_i32 s{cG}, s{sT0}, 3584")
            a(f"s_mul_i32 s{cX}, s2, {14*2048}"); a(f"s_lshl_b32 s{cH}, s2, 13")
        elif w == 3:
            a(f"s_lshr_b32 s{sT0}, s2, 3")
            a(f"v_min_u32 v{T0}, 23, v{L}"); a(f"v_lshrrev_b32 v{T1}, 3, v{T0}"); a(f"v_and_b32 v{T0}, 7, v{T0}")
            a(f"v_lshlrev_b32 v{T0}, 6, v{T0}"); a(f"v_lshl_add_u32 v{vD}, v{T1}, 11, v{T0}")
            a(f"v_min_u32 v{T0}, 27, v{L}"); a(f"v_lshlrev_b32 v{vD+1}, 6, v{T0}")
            a(f"v_bfe_u32 v{T0}, v{L}, 4, 1"); a(f"v_and_b32 v{T1}, 15, v{L}"); a(f"v_lshlrev_b32 v{T1}, 6, v{T1}"); a(f"v_lshl_add_u32 v{vD+2}, v{T0}, 15, v{T1}")
            p0 = NP0
            a(f"s_add_u32 s{sT1}, s{sT0}, {32*p0}")
            a(f"s_mul_i32 s{cQ}, s{sT1}, 6144"); a(f"s_lshl_b32 s{sT2}, s{sS}, 9"); a(f"s_add_u32 s{cQ}, s{cQ}, s{sT2}")
            a(f"s_mul_i32 s{cG}, s{sT1}, 7168"); a(f"s_mul_i32 s{sT2}, s{sS}, 1792"); a(f"s_add_u32 s{cG}, s{cG}, s{sT2}")
            a(f"s_and_b32 s{sT2}, s2, 1"); a(f"s_lshl_b32 s{sT2}, s{sT2}, 5"); a(f"s_add_u32 s{sT2}, s{sT2}, s{sT0}")
            a(f"s_lshl_b32 s{cX}, s{sT2}, 16"); a(f"s_add_u32 s{cX}, s{cX}, {1024*p0}")
        a("s_waitcnt lgkmcnt(0)")
        if cfg.get("prof") == 3: stamp(k, cfg, 21)
        srd(k, SX, pWS, pWS + 1, 2048 * 2048, XN_OFF)
        srd(k, SQ, pQKV, pQKV + 1, 1024 * 6144)
        srd(k, SG, pG, pG + 1, 1024 * 7168)
        srd(k, SU, pU, pU + 1, 1024 * 7168)
        usepf = cfg.get("pf", 2)
        PB = cfg.get("pb", 1)
        if w < 3:
            for q in range(NP0): emit(k, dma(w, q))
        elif usepf == 1:
            for p in range(NP0, 4 + PFD): emit_nt(pf())
        if cfg.get("prof") == 3: stamp(k, cfg, 22)
        srd(k, SF, pWS, pWS + 1, FLAG_BYTES, FLAG_OFF)
        common_setup()
        if w == 3:
            a(f"s_lshl_b32 s{sT0}, s{sJ}, 2"); a(f"s_add_u32 s{sT0}, s{sT0}, s{sGF}")
            a("s_mov_b64 exec, 1")
            a(f"buffer_store_dword v{vXcc}, v{vL16}, s[{SF}:{SF+3}], s{sT0} offen offset:512 sc1")
            a("s_mov_b64 exec, -1")
        a(f"v_add_u32 v{vX}, {XR + mh*8192}, v{vL16}")
        a(f"v_add_u32 v{vHX}, {HR}, v{vL16}")
        a(f"v_lshrrev_b32 v{T0}, 4, v{L}"); a(f"v_bfe_u32 v{T1}, v{L}, 2, 2"); a(f"v_lshl_add_u32 v{T1}, v{T0}, 2, v{T1}")
        a(f"v_and_b32 v{T2}, 3, v{L}"); a(f"v_lshlrev_b32 v{T2}, 3, v{T2}")
        a(f"v_mul_u32_u24 v{T3}, 224, v{T1}"); a(f"v_add_u32 v{T3}, v{T3}, v{T2}")
        if nh == 0:
            a(f"v_mul_u32_u24 v{vWa}, 192, v{T1}"); a(f"v_add_u32 v{vWa}, v{vWa}, v{T2}"); a(f"v_add_u32 v{vWa}, {QR}, v{vWa}")
            a(f"v_and_b32 v{T0}, 1, v{T0}"); a(f"v_lshlrev_b32 v{T0}, 5, v{T0}")
            a(f"v_sub_u32 v{vWb}, v{vWa}, v{T0}"); a(f"v_add_u32 v{vWa}, v{vWa}, v{T0}")
            a(f"s_mul_i32 s{sT0}, s{sODD}, 160"); a(f"s_add_u32 s{sT0}, s{sT0}, {GR}"); a(f"v_add_u32 v{vWc}, s{sT0}, v{T3}")
        else:
            a(f"s_lshl_b32 s{sT0}, s{sODD}, 5"); a(f"s_sub_u32 s{sT0}, {GR+64}, s{sT0}"); a(f"v_add_u32 v{vWa}, s{sT0}, v{T3}")
            a(f"s_mul_i32 s{sT0}, s{sODD}, 192"); a(f"s_sub_u32 s{sT0}, {GR+192}, s{sT0}"); a(f"v_add_u32 v{vWb}, s{sT0}, v{T3}")
        stamp(k, cfg, 1)
        k.wait_vm(0); a("s_barrier")
        stamp(k, cfg, 2)
        emit(k, xread(nh, 0, 0))
        for t in range(10): emit(k, wread(nh, t, 0, 0))
        lab = [0]
        def join(L, q=None):
            if not L: return []
            t = "\n".join(t for t, _ in L)
            if q is not None and cfg.get("stag", 1):
                lab[0] += 1
                t = f"s_cmp_lg_u32 s{sCur}, {q}\ns_cbranch_scc1 L_pfs{lab[0]}\n" + t + f"\n@L_pfs{lab[0]}"
            elif q: return []
            return [(t, "pf")]
        def fill(q):
            if w < 3: return dma(w, q)
            if usepf == 1: return pf()
            if usepf == 2: return loop_pf[q]
            return []
        if w == 3 and usepf == 2:
            srd(k, SO, pWO, pWO + 1, 1024 * 2048)
            first_pf = {q: join(sum([pfb(False) for _ in range(PB)], []) + pfwo(), q) for q in range(4)}
            loop_pf = {q: join(pfb(), q) for q in range(4)}
        nxt = NP0
        for p in range(4):
            f = []
            if w < 3:
                cnt = 0
                while nxt <= p + 4 and cnt < 2:
                    f += dma(w, nxt % 4); nxt += 1; cnt += 1
            else: f = first_pf[p] if usepf == 2 else fill(p)
            phase(k, w, p, f, first=(p == 0))
            if cfg.get("prof") == 3: stamp(k, cfg, 24 + p)
        assert w == 3 or nxt == 8
        a(f"s_mov_b32 s{sCnt}, 0")
        def body(k):
            k.label(f"L_g1_loop{w}")
            for q in range(4): phase(k, w, q, fill(q))
            if cfg.get("prof"):
                k.raw(f"s_add_u32 s100, s{sCnt}, 3"); stamp(k, cfg, "s100")
            k.raw(f"s_add_u32 s{sCnt}, s{sCnt}, 1"); k.raw(f"s_cmp_lt_u32 s{sCnt}, 6"); k.raw(f"s_cbranch_scc1 L_g1_loop{w}")
        k.loop(body)
        tails[w] = k.snap()
        if w == 2:
            a("s_branch L_tail2")
            continue
        if w == 3:
            a.label("L_tail2")
            k.merge([tails[2], tails[3]])
        srd(k, SQ, pWO, pWO + 1, 1024 * 2048)
        srd(k, SG, pD, pD + 1, 3584 * 2048)
        srd(k, SO, pOUT, pOUT + 1, 2048 * 2048)
        a(f"s_lshr_b32 s{sT0}, s2, 3"); a(f"s_lshl_b32 s{sT0}, s{sT0}, 2"); a(f"s_add_u32 s{sT0}, s{sT0}, s{sW}")
        a(f"s_lshl_b32 s{cQ}, s{sT0}, 12"); a(f"s_lshl_b32 s{sT1}, s{sS}, 19"); a(f"s_add_u32 s{cQ}, s{cQ}, s{sT1}")
        a(f"s_mul_i32 s{cG}, s{sT0}, {7*2048}"); a(f"s_mul_i32 s{sT1}, s{sS}, {896*2048}"); a(f"s_add_u32 s{cG}, s{cG}, s{sT1}")
        pw = [(f"buffer_load_dword v{vD}, v{vPFW}, s[{SQ}:{SQ+3}], s{cQ} offen", "pw")]
        for n in range(4):
            pw += [(f"buffer_load_dword v{vD+1+n}, v{vPFW}, s[{SG}:{SG+3}], s{cG} offen", "pw"), (f"s_add_u32 s{cG}, s{cG}, 4096", None)]
        if not cfg.get("pw", 0): pw = []
        xt = [(f"v_lshrrev_b32 v{vPoll}, 2, v{vL16}", None),
              (f"buffer_load_dword v{vPoll}, v{vPoll}, s[{SF}:{SF+3}], s{sGF} offen offset:512 sc1", "xcc")]
        w2 = []
        for q in range(NS): w2 += w2dma(q, q)
        phase(k, min(w, 2), 0, xt + pw[:5])
        phase(k, min(w, 2), 1, pw[5:])
        phase(k, min(w, 2), 2, [])
        phase(k, min(w, 2), 3, w2, last=True)
        stamp(k, cfg, 10)
        tails[("t", w)] = k.snap()
        if w == 0:
            a("s_branch L_epi0")
            continue
        if w == 1:
            a.label("L_epi0")
            k.merge([tails[("t", 0)], tails[("t", 1)]])
        k(f"v_cmp_eq_u32 vcc, v{vXcc}, v{vPoll}")
        a(f"s_and_b32 s{sSlow}, vcc_lo, 0xff"); a(f"s_xor_b32 s{sSlow}, s{sSlow}, 0xff")
        if nh == 0: epilogue0(k, cfg)
        else: epilogue1(k, cfg)
        stamp(k, cfg, 11)
        tails[("e", nh)] = k.snap()
        if nh == 0: a("s_branch L_g2")
    a.label("L_g2")
    k.merge([tails[("e", 0)], tails[("e", 1)]])
    gen_g2(a, k, cfg, x2dma, w2dma)
    prof_store(k, cfg)
    a.label("L_end")
    a("s_endpgm")
    poll_slow(a, 0, "p1")
    poll_slow(a, 1, "p2")

def epilogue1(k, cfg):
    a = k.raw
    units = []
    n = 0
    for b in range(2):
        for i in range(8):
            F = [(acc(2*b + f, i), acc(5 + 2*b + f, i)) for f in range(2)]
            units.append(glu_unit(F, 192 + 8 * (n % 4), st_full(i, sB0 + b, 2 * b, "st1" if b == 0 else "st2"))); n += 1
    for i in range(0, 8, 2):
        F = [(acc(4, i + f), acc(9, i + f)) for f in range(2)]
        def store(P, i=i):
            return [(f"s_add_u32 s{sT0}, s{sB0+2}, {i*MFS}", None),
                    (f"buffer_store_dwordx4 v[{P}:{P+3}], v{vSS}, s[{SA}:{SA+3}], s{sT0} offen", "st2")]
        units.append(glu_unit(F, 192 + 8 * (n % 4), store)); n += 1
    NB = cfg.get("e1_bar", 12); NF = cfg.get("e1_flag", 14); NPOLL = cfg.get("e1_poll", 18)
    for u, L in enumerate(units):
        if u == NB: a("s_barrier")
        if u == NF: set_flag(k, 0, "st1", "e1")
        if u == NPOLL: emit(k, poll_issue(0))
        emit(k, L)

def epilogue0(k, cfg):
    a = k.raw
    V0, V1, KM = 192, 210, 228
    for i in range(8):
        F = [(acc(6 + f, i), acc(8 + f, i)) for f in range(2)]
        emit(k, glu_unit(F, 192 + 16 * (i % 2), st_full(i, sB0, 1, "st1")))
    def packqk(base, i):
        r0 = base + 4 * i; r1 = base + 32 + 4 * i
        return [f"v_cvt_pk_bf16_f32 v{r0}, v{r0}, v{r0+1}", f"v_cvt_pk_bf16_f32 v{r0+1}, v{r0+2}, v{r0+3}",
                f"v_cvt_pk_bf16_f32 v{r0+2}, v{r1}, v{r1+1}", f"v_cvt_pk_bf16_f32 v{r0+3}, v{r1+2}, v{r1+3}"]
    def packv(i):
        L = []
        for Vb, src in ((V0, 128), (V1, 160)):
            d = Vb + 2 * (i + 1); r = src + 4 * i
            L += [f"v_cvt_pk_bf16_f32 v{d}, v{r}, v{r+1}", f"v_cvt_pk_bf16_f32 v{d+1}, v{r+2}, v{r+3}"]
        return L
    for x in packqk(64, 7) + packv(7): k(x)
    H = 188
    for j in range(4): k(f"v_accvgpr_read_b32 v{156+j}, a{HACC+j}")
    for j in range(4): k(f"v_accvgpr_read_b32 v{188+j}, a{HACC+4+j}")
    k(f"v_cvt_pk_bf16_f32 v{KM}, v156, v157"); k(f"v_cvt_pk_bf16_f32 v{KM+1}, v158, v159")
    k(f"v_cvt_pk_bf16_f32 v{KM+2}, v188, v189"); k(f"v_cvt_pk_bf16_f32 v{KM+3}, v190, v191")
    vEx = 156
    k(f"v_add_u32 v{vEx}, {EXCH}, v{vL16}")
    a(f"s_cmp_eq_u32 s{sMH}, 1"); a("s_cbranch_scc1 L_ex_w1")
    a(f"ds_write_b128 v{vEx}, v[92:95] offset:1024")
    a(f"ds_write_b64 v{vEx}, v[{V0+16}:{V0+17}] offset:2048")
    a(f"ds_write_b64 v{vEx}, v[{V1+16}:{V1+17}] offset:2056")
    a("s_branch L_ex_wd")
    k.label("L_ex_w1")
    a(f"ds_write_b128 v{vEx}, v[{KM}:{KM+3}]")
    k.label("L_ex_wd")
    k.lq.append(set())
    for i in range(7):
        for x in packqk(64, i) + packv(i): k(x)
    for i in range(8):
        for x in packqk(0, i): k(x)
    bA, bB, bA0, ONE, mA, mB = 96, 100, 104, 108, 112, 114
    tI, tG, t0, t1, t2, NEG = 116, 117, 118, 119, 120, 121
    a(f"v_bfe_u32 v{tI}, v{vL16}, 4, 4"); a(f"v_lshrrev_b32 v{tG}, 8, v{vL16}"); a(f"v_lshlrev_b32 v{tG}, 2, v{tG}")
    a(f"v_mov_b32 v{NEG}, {f2u(-1e30)}")
    a(f"s_or_b32 s{sT0}, s{sMT}, s{sMH}"); a(f"s_cmp_eq_u32 s{sT0}, 0"); a(f"s_cselect_b64 s[{sT2}:{sT2+1}], 0, -1")
    for rr in range(4):
        a(f"v_add_u32 v{t0}, {rr}, v{tG}")
        a(f"v_sub_u32 v{t1}, v{tI}, v{t0}")
        a(f"v_and_b32 v{t2}, 0x80000001, v{t1}")
        a(f"v_cmp_eq_u32 vcc, 0, v{t2}"); a(f"v_cndmask_b32 v{bB+rr}, v{NEG}, 0, vcc")
        a(f"v_cmp_eq_u32 vcc, 0x80000000, v{t2}"); a(f"v_cndmask_b32 v{bA+rr}, v{NEG}, 0, vcc")
        a(f"v_cndmask_b32 v{bA0+rr}, v{NEG}, v{bA+rr}, s[{sT2}:{sT2+1}]")
        a(f"v_ashrrev_i32 v{t1}, 31, v{t1}")
        if rr % 2 == 0: a(f"v_and_b32 v{mA+rr//2}, 0xffff, v{t1}")
        else:
            a(f"v_and_b32 v{t1}, 0xffff0000, v{t1}"); a(f"v_or_b32 v{mA+rr//2}, v{mA+rr//2}, v{t1}")
            a(f"v_not_b32 v{mB+rr//2}, v{mA+rr//2}")
        a(f"v_mov_b32 v{ONE+rr}, 0x3f803f80")
    a(f"s_mov_b32 s{sT3}, {f2u(LOG2E / math.sqrt(32.0))}")
    def batch(units):
        S1 = []; S2 = []; S3 = []
        Ms = []
        for u, i in enumerate(units):
            B = 128 + 16 * u; SAa, SBb, O0, O1 = B, B + 4, B + 8, B + 12
            Sm, M = 32 + 8 * u, 36 + 8 * u
            Kp = KM if i == 0 else 64 + 4 * (i - 1)
            L = [f"{MF} v[{SAa}:{SAa+3}], v[{Kp}:{Kp+3}], v[{4*i}:{4*i+3}], v[{(bA0 if i == 0 else bA)}:{(bA0 if i == 0 else bA)+3}]",
                 f"{MF} v[{SBb}:{SBb+3}], v[{64+4*i}:{67+4*i}], v[{4*i}:{4*i+3}], v[{bB}:{bB+3}]"]
            for rr in range(4): L.append(f"v_max_f32 v{SAa+rr}, v{SAa+rr}, v{SBb+rr}")
            L += [f"v_max3_f32 v{M}, v{SAa}, v{SAa+1}, v{SAa+2}", f"v_max_f32 v{M}, v{M}, v{SAa+3}"]
            S1.append([(x, None) for x in L]); Ms.append(M)
            L = []
            for rr in range(4): L.append(f"v_fma_f32 v{SAa+rr}, v{SAa+rr}, s{sT3}, -v{M}")
            for rr in range(4): L.append(f"v_exp_f32 v{SAa+rr}, v{SAa+rr}")
            L += [f"v_cvt_pk_bf16_f32 v{SAa}, v{SAa}, v{SAa+1}", f"v_cvt_pk_bf16_f32 v{SAa+1}, v{SAa+2}, v{SAa+3}"]
            L += [f"v_and_b32 v{SBb}, v{mA}, v{SAa}", f"v_and_b32 v{SBb+1}, v{mA+1}, v{SAa+1}",
                  f"v_and_b32 v{SBb+2}, v{mB}, v{SAa}", f"v_and_b32 v{SBb+3}, v{mB+1}, v{SAa+1}"]
            L += [f"{MF} v[{Sm}:{Sm+3}], v[{ONE}:{ONE+3}], v[{SBb}:{SBb+3}], 0",
                  f"{MF} v[{O0}:{O0+3}], v[{V0+2*i}:{V0+2*i+3}], v[{SBb}:{SBb+3}], 0",
                  f"{MF} v[{O1}:{O1+3}], v[{V1+2*i}:{V1+2*i+3}], v[{SBb}:{SBb+3}], 0",
                  f"v_rcp_f32 v{Sm}, v{Sm}"]
            for j in range(0, 8, 2): L.append(f"v_pk_mul_f32 v[{O0+j}:{O0+j+1}], v[{O0+j}:{O0+j+1}], v[{Sm}:{Sm+1}] op_sel_hi:[1,0]")
            D = SAa
            L += [f"v_cvt_pk_bf16_f32 v{D}, v{O0}, v{O0+1}", f"v_cvt_pk_bf16_f32 v{D+1}, v{O0+2}, v{O0+3}",
                  f"v_cvt_pk_bf16_f32 v{D+2}, v{O1}, v{O1+1}", f"v_cvt_pk_bf16_f32 v{D+3}, v{O1+2}, v{O1+3}",
                  f"v_permlane16_swap_b32 v{D}, v{D+2}", f"v_permlane16_swap_b32 v{D+1}, v{D+3}"]
            st = st_full(i, sB0 + 1, 3, "st2")(D)
            S3.append([(x, None) for x in L] + [(st[0][0] + "\n" + st[1][0], "st2"), st[2]])
        Ma, Mb, Mc, Md = Ms
        X = [f"v_permlane16_swap_b32 v{Ma}, v{Mb}", f"v_permlane16_swap_b32 v{Mc}, v{Md}",
             f"v_max_f32 v{Ma}, v{Ma}, v{Mb}", f"v_max_f32 v{Mc}, v{Mc}, v{Md}",
             f"v_permlane32_swap_b32 v{Ma}, v{Mc}", f"v_max_f32 v{Ma}, v{Ma}, v{Mc}",
             f"v_mul_f32 v{Ma}, s{sT3}, v{Ma}", f"v_mov_b32 v{Mc}, v{Ma}",
             f"v_permlane32_swap_b32 v{Ma}, v{Mc}",
             f"v_mov_b32 v{Mb}, v{Ma}", f"v_mov_b32 v{Md}, v{Mc}",
             f"v_permlane16_swap_b32 v{Ma}, v{Mb}", f"v_permlane16_swap_b32 v{Mc}, v{Md}"]
        emit(k, interleave(*S1)); emit(k, [(x, None) for x in X]); emit(k, interleave(*S3))
    batch([1, 2, 3, 4])
    set_flag(k, 0, "st1", "e0")
    k.wait_lgkm0(force=True); a("s_barrier")
    vEx = 122
    a(f"v_add_u32 v{vEx}, {EXCH}, v{vL16}")
    a(f"s_cmp_eq_u32 s{sMH}, 1"); a("s_cbranch_scc1 L_ex_r1")
    a(f"ds_read_b64 v[{V0}:{V0+1}], v{vEx}")
    a(f"ds_read_b64 v[{V1}:{V1+1}], v{vEx} offset:8")
    a("s_branch L_ex_rd")
    k.label("L_ex_r1")
    a(f"ds_read_b128 v[{KM}:{KM+3}], v{vEx} offset:1024")
    a(f"ds_read_b64 v[{V0}:{V0+1}], v{vEx} offset:2048")
    a(f"ds_read_b64 v[{V1}:{V1+1}], v{vEx} offset:2056")
    k.label("L_ex_rd")
    k.lq.append({("v", r) for r in (KM, KM + 1, KM + 2, KM + 3, V0, V0 + 1, V1, V1 + 1)})
    emit(k, poll_issue(0)) if cfg.get("e0_poll", 0) == 0 else None
    batch([5, 6, 7, 0])
    emit(k, poll_issue(0)) if cfg.get("e0_poll", 0) == 1 else None

def gen_g2(a, k, cfg, x2dma, w2dma):
    NPH = 36
    NPRE = cfg.get("g2_npre", 2)
    XBv = [128, 160]; WBv = [192, 208]
    U0, U1, U2, U3 = 224, 225, 226, 227
    def xread(q, par):
        vx = vX0 if q < 3 else vX1
        return [(f"ds_read_b128 {R('v', XBv[par]+4*i)}, v{vx} offset:{(q%3)*16384+i*1024}", None) for i in range(8)]
    def wread(q, par):
        L = []
        for t in range(4):
            d = WBv[par] + 4 * t
            L += [(f"ds_read_b64_tr_b16 v[{d}:{d+1}], v{vW+t} offset:{q*8192}", None),
                  (f"ds_read_b64_tr_b16 v[{d+2}:{d+3}], v{vW+t} offset:{q*8192+4096}", None)]
        return L
    def phase(k, q, fill, first=False, last=False, post=None):
        par = q & 1
        M = []
        for t in range(4):
            for i in range(8):
                c = (i * 4 + t) * 4
                M.append(f"{MF} {R('v', c)}, {R('v', WBv[par]+4*t)}, {R('v', XBv[par]+4*i)}, {'0' if first else R('v', c)}")
        for m in M[:NPRE]: k(m)
        if last:
            for m in M[NPRE:]: k(m)
            return
        nq = (q + 1) % NS
        k.wait_vm(("g2", nq), lgkm0=True); k.raw("s_barrier")
        if post: post()
        n = len(M) - NPRE
        rd = wread(nq, par ^ 1)[:2] + xread(nq, par ^ 1) + wread(nq, par ^ 1)[2:]
        F = spread(rd, 0, n - 8, "x")
        F += spread(fill, 0, min(n - 1, cfg.get("g2_dend", n - 1)), "d")
        for t, tag in schedule(M[NPRE:], F, cfg.get("cap2", 1)): emit(k, [(t, tag)])
    k.wait_vm(("g2", 0), lgkm0=True); a("s_barrier")
    stamp(k, cfg, 12)
    emit(k, wread(0, 0)[:2] + xread(0, 0) + wread(0, 0)[2:])
    FL2 = cfg.get("g2_flag", 2); P2 = cfg.get("g2_poll", 7)
    for p in range(12):
        q = p % NS
        f = []
        if p == 0: f += poll_check("p1") + x2dma(4, 4) + x2dma(5, 5)
        f += x2dma(q, p + 6) + w2dma(q, p + 6)
        if p == P2: f += poll_issue(1)
        if p == 11: f += poll_check("p2")
        phase(k, q, f, first=(p == 0), post=(lambda: set_flag(k, 1, "st2", "g2")) if p == FL2 else None)
        if cfg.get("prof") == 2 and p < 10: stamp(k, cfg, 21 + p)
    stamp(k, cfg, 13)
    a(f"s_mov_b32 s{sCnt}, 0"); a(f"s_mov_b32 s{sCur}, 18")
    def body(k):
        k.label("L_g2_loop")
        for q in range(NS):
            phase(k, q, x2dma(q, f"s{sCur}") + w2dma(q, f"s{sCur}") + [(f"s_add_u32 s{sCur}, s{sCur}, 1", None)])
        if cfg.get("prof"):
            k.raw(f"s_add_u32 s100, s{sCnt}, 14"); stamp(k, cfg, "s100")
        k.raw(f"s_add_u32 s{sCnt}, s{sCnt}, 1"); k.raw(f"s_cmp_lt_u32 s{sCnt}, 3"); k.raw("s_cbranch_scc1 L_g2_loop")
    k.loop(body)
    for q in range(NS): phase(k, q, [], last=(q == NS - 1))
    stamp(k, cfg, 17)
    a(f"s_lshl_b32 s{sT0}, s{sTile}, 4"); a(f"s_add_u32 s{sT0}, s{sT0}, s{sS}"); a(f"s_lshl_b32 s{sT0}, s{sT0}, 2"); a(f"s_add_u32 s{sT0}, s{sT0}, s{sW}"); a(f"s_lshl_b32 s{sT0}, s{sT0}, 12")
    for jj in range(1, 4):
        a(f"s_add_u32 s{sT1}, s{sS}, {jj}"); a(f"s_and_b32 s{sT1}, s{sT1}, 3"); a(f"s_lshl_b32 s{sT1}, s{sT1}, 16"); a(f"s_add_u32 s{sT1}, s{sT1}, s{sT0}")
        for n in range(4):
            c = jj * 32 + n * 8; P = 128 + (jj * 4 + n) * 4
            for r in range(4): k(f"v_cvt_pk_bf16_f32 v{P+r}, v{c+2*r}, v{c+2*r+1}")
            k(f"buffer_store_dwordx4 v[{P}:{P+3}], v{vL16}, s[{SP}:{SP+3}], s{sT1} offen offset:{n*1024} sc1")
    vXa, vOut = 228, 229
    a(f"v_bfe_u32 v{U0}, v{vL16}, 4, 4"); a(f"v_lshlrev_b32 v{U0}, 11, v{U0}")
    a(f"v_lshrrev_b32 v{U1}, 8, v{vL16}")
    a(f"v_lshl_add_u32 v{vXa}, v{U1}, 3, v{U0}")
    a(f"v_and_b32 v{U2}, 1, v{U1}"); a(f"v_lshl_add_u32 v{vOut}, v{U2}, 5, v{U0}")
    a(f"v_lshrrev_b32 v{U2}, 1, v{U1}"); a(f"v_lshl_add_u32 v{vOut}, v{U2}, 4, v{vOut}")
    s62, s63, s55, s56, s57, s58 = sB0, sB0 + 1, sB0 + 2, sB0 + 3, sT2, sT3
    a(f"s_lshl_b32 s{s62}, s{sMT}, 1"); a(f"s_add_u32 s{s62}, s{s62}, s{sMH}"); a(f"s_lshl_b32 s{s62}, s{s62}, 2"); a(f"s_add_u32 s{s62}, s{s62}, s{sS}"); a(f"s_lshl_b32 s{s62}, s{s62}, 16")
    a(f"s_lshl_b32 s{s63}, s{sJ}, 1"); a(f"s_add_u32 s{s63}, s{s63}, s{sNH}"); a(f"s_lshl_b32 s{s63}, s{s63}, 7"); a(f"s_add_u32 s{s62}, s{s62}, s{s63}")
    a(f"s_add_u32 s{s63}, s{s62}, 32768")
    XRr = 192
    k.wait_vm0(force=True)
    stamp(k, cfg, 18)
    a(f"s_lshl_b32 s{s55}, s{sTile}, 2"); a(f"s_add_u32 s{s55}, s{s55}, s{sW}"); a(f"s_lshl_b32 s{s55}, s{s55}, 6")
    a(f"s_lshl_b32 s{s56}, s{sS}, 2"); a(f"s_add_u32 s{s56}, s{s56}, s{s55}")
    a(f"v_mov_b32 v{U0}, 1"); a(f"v_mov_b32 v{U1}, 0")
    a("s_mov_b64 exec, 1")
    a(f"buffer_store_dword v{U0}, v{U1}, s[{SF}:{SF+3}], s{s56} offen sc1")
    a("s_mov_b64 exec, -1")
    for ii in range(2):
        for t in range(4):
            r = XRr + (ii * 4 + t) * 2
            a(f"buffer_load_dwordx2 v[{r}:{r+1}], v{vXa}, s[{SXR}:{SXR+3}], s{s62+ii} offen offset:{t*32}")
    a(f"s_mov_b32 s{s57}, 0")
    a.label("L_g2_poll")
    a(f"buffer_load_dwordx4 v[232:235], v{U1}, s[{SF}:{SF+3}], s{s55} offen sc1")
    a("s_waitcnt vmcnt(0)")
    a("v_and_b32 v232, v232, v233"); a("v_and_b32 v234, v234, v235"); a("v_and_b32 v232, v232, v234")
    a(f"v_readfirstlane_b32 s{s58}, v232")
    a(f"s_add_u32 s{s57}, s{s57}, 1")
    a(f"s_cmp_ge_u32 s{s57}, {SPIN}"); a("s_cbranch_scc1 L_g2_polldone")
    a(f"s_cmp_eq_u32 s{s58}, 1"); a("s_cbranch_scc0 L_g2_poll")
    a.label("L_g2_polldone")
    stamp(k, cfg, 19)
    k.reset()
    a(f"s_lshl_b32 s{sT0}, s{sTile}, 2"); a(f"s_add_u32 s{sT0}, s{sT0}, s{sS}"); a(f"s_lshl_b32 s{sT0}, s{sT0}, 4"); a(f"s_add_u32 s{sT0}, s{sT0}, s{sW}"); a(f"s_lshl_b32 s{sT0}, s{sT0}, 12")
    for m in range(3):
        a(f"s_add_u32 s{sT1}, s{sS}, {m+1}"); a(f"s_and_b32 s{sT1}, s{sT1}, 3"); a(f"s_lshl_b32 s{sT1}, s{sT1}, 14"); a(f"s_add_u32 s{sT1}, s{sT1}, s{sT0}")
        for n in range(4):
            B = 128 + (m * 4 + n) * 4
            k(f"buffer_load_dwordx4 v[{B}:{B+3}], v{vL16}, s[{SP}:{SP+3}], s{sT1} offen offset:{n*1024} sc1")
    def addp(c, p, n):
        t0, t1 = 208 + 2 * (n % 8), 209 + 2 * (n % 8)
        k(f"v_lshlrev_b32 v{t0}, 16, v{p}"); k(f"v_and_b32 v{t1}, 0xffff0000, v{p}")
        k(f"v_pk_add_f32 v[{c}:{c+1}], v[{c}:{c+1}], v[{t0}:{t1}]")
    for r in range(16): addp(2 * r, XRr + r, r)
    for m in range(3):
        for r in range(16): addp(2 * r, 128 + m * 16 + r, r)
    for n in range(4):
        c = n * 8; P = 176 + 4 * n
        for r in range(4): k(f"v_cvt_pk_bf16_f32 v{P+r}, v{c+2*r}, v{c+2*r+1}")
        k(f"v_permlane16_swap_b32 v{P}, v{P+2}"); k(f"v_permlane16_swap_b32 v{P+1}, v{P+3}")
        k(f"buffer_store_dwordx4 v[{P}:{P+3}], v{vOut}, s[{SO}:{SO+3}], s{s62 + n//2} offen offset:{64*(n%2)}")
    stamp(k, cfg, 20)

def gen_touch(a, cfg):
    k = K(a); mode = cfg["touch"]
    header(a, "touch_kernel")
    a("s_cmp_ge_u32 s2, 256"); a("s_cbranch_scc1 L_t_end")
    a("s_load_dwordx16 s[4:19], s[0:1], 0")
    a("s_waitcnt lgkmcnt(0)")
    srd(k, SQ, pQKV, pQKV + 1, 1024 * 6144); srd(k, SG, pG, pG + 1, 1024 * 7168); srd(k, SU, pU, pU + 1, 1024 * 7168)
    if mode in (1, 3):
        a("s_lshr_b32 s3, s2, 3"); a("s_lshl_b32 s3, s3, 8"); a("v_add_u32 v1, s3, v0"); a(f"v_lshlrev_b32 v1, {12 if mode == 1 else 16}, v1")
        for n, S in enumerate((SQ, SG, SU)): a(f"buffer_load_dword v{2+n}, v1, s[{S}:{S+3}], 0 offen")
    else:
        a("s_lshl_b32 s3, s2, 8"); a("v_add_u32 v1, s3, v0"); a("v_lshlrev_b32 v1, 7, v1")
        for n, S in enumerate((SQ, SG, SU)):
            a(f"buffer_load_dword v{2+2*n}, v1, s[{S}:{S+3}], 0 offen")
            a(f"buffer_load_dword v{3+2*n}, v1, s[{S}:{S+3}], 0 offen offset:64")
    a("s_waitcnt vmcnt(0)")
    a.label("L_t_end"); a("s_endpgm")

def build(cfg):
    a = Asm()
    gen_ln(a, cfg); gen_main(a, cfg)
    if cfg.get("touch"): gen_touch(a, cfg)
    body = a.finalize()
    hdr = (["; @launch kernel=touch_kernel grid=(256,1,1) block=(256,1,1) lds=256"] if cfg.get("touch") else []) + ["; @launch kernel=ln_kernel grid=(256,1,1) block=(256,1,1) lds=256",
           f"; @launch kernel={KN} grid=(256,1,1) block=(256,1,1) lds={LDS}",
           '.amdgcn_target "amdgcn-amd-amdhsa--gfx950"', ".text"]
    tail = ['.section .rodata,"a"', ".p2align 6", descriptor("ln_kernel", 104, 40), ".p2align 6", descriptor(KN, 512, 102, 256)]
    if cfg.get("touch"): tail += [".p2align 6", descriptor("touch_kernel", 16, 64)]
    return "\n".join(hdr) + "\n" + body + "\n" + "\n".join(tail) + "\n"

if __name__ == "__main__":
    out = sys.argv[1]
    cfg = {}
    for kv in sys.argv[2:]:
        kk, v = kv.split("=")
        cfg[kk] = int(v)
    open(out, "w").write(build(cfg))
    print("wrote", out)
```
